```python
import torch

def _softmax(x, axis=-1):
    return torch.softmax(x, dim=axis)
def _gelu(x):
    return torch.nn.functional.gelu(x, approximate="tanh")
def _silu(x):
    return torch.nn.functional.silu(x)
def _sigmoid(x):
    return torch.sigmoid(x)
def _layernorm(x, axis=-1, eps=1e-5):
    m = x.mean(dim=axis, keepdim=True)
    v = x.var(dim=axis, keepdim=True, unbiased=False)
    return (x - m) / torch.sqrt(v + eps)
def _scatter_add(tgt, idx, src, axis=0):
    return tgt.clone().index_add_(axis, idx, src)
def _segment_sum(src, seg, n):
    out = torch.zeros((n,) + src.shape[1:], dtype=src.dtype)
    return out.index_add_(0, seg, src)
def _pad(x, pw):
    flat = tuple(v for pair in reversed(pw) for v in pair)
    return torch.nn.functional.pad(x, flat)

kernel_name = 'concat_heads__linear_kernel_hedgehog__grouped_kv_mqa__prompt'

def setup_inputs():

    _w = (lambda a: (lambda t: t.to(torch.bfloat16) if t.is_floating_point() else t)(torch.as_tensor(a)))
    def _A_setup():
        B, S, D, H = 1, 2048, 1024, 32
        Dh = D // H
        return {
            "x": _w((lambda *s: torch.randn(*s, dtype=torch.bfloat16) * 0.4)(B, S, D)),
            "wqkv": _w((lambda *s: torch.randn(*s, dtype=torch.bfloat16) * 0.4)(D, 3 * D)),
            "w_phi": _w((lambda *s: torch.randn(*s, dtype=torch.bfloat16) * 0.4)(H, Dh, Dh) * (Dh ** -0.5)),
            "wo": _w((lambda *s: torch.randn(*s, dtype=torch.bfloat16) * 0.05)(D, D)),
        }
    _A_in = _A_setup()

    def _B_setup():
        B, S, D, H = 1, 2048, 1024, 32
        Dh = D // H
        return {
            "x": _w((lambda *s: torch.randn(*s, dtype=torch.bfloat16) * 0.05)(B, S, D)),
            "wq": _w((lambda *s: torch.randn(*s, dtype=torch.bfloat16) * 0.8)(D, H * Dh)),
            "wk": _w((lambda *s: torch.randn(*s, dtype=torch.bfloat16) * 0.8)(D, Dh)),
            "wv": _w((lambda *s: torch.randn(*s, dtype=torch.bfloat16) * 0.1)(D, Dh)),
            "wo": _w((lambda *s: torch.randn(*s, dtype=torch.bfloat16) * 0.1)(H * Dh, D)),
        }
    _B_in = _B_setup()

    return {
        "A_x": _A_in["x"],
        "A_wqkv": _A_in["wqkv"],
        "A_w_phi": _A_in["w_phi"],
        "A_wo": _A_in["wo"],
        "B_x": _B_in["x"],
        "B_wq": _B_in["wq"],
        "B_wk": _B_in["wk"],
        "B_wv": _B_in["wv"],
        "B_wo": _B_in["wo"],
    }

def reference(A_x, A_wqkv, A_w_phi, A_wo, B_x, B_wq, B_wk, B_wv, B_wo):
    def _A_ref(x, wqkv, w_phi, wo):
        B, S, D = x.shape
        H = 32; Dh = D // H
        qkv = (lambda x, *d: x.permute(*d))((x @ wqkv).reshape(B, S, 3, H, Dh), 2, 0, 3, 1, 4)
        q, k, v = qkv[0], qkv[1], qkv[2]
        pq = torch.einsum("bhsd,hdf->bhsf", q, w_phi)
        pk = torch.einsum("bhsd,hdf->bhsf", k, w_phi)
        phi_q = torch.concatenate([_softmax(pq, axis=-1), _softmax(-pq, axis=-1)], axis=-1)
        phi_k = torch.concatenate([_softmax(pk, axis=-1), _softmax(-pk, axis=-1)], axis=-1)
        kv = torch.einsum("bhsf,bhsd->bhfd", phi_k, v)
        z  = torch.einsum("bhsf->bhf", phi_k)
        num = torch.einsum("bhqf,bhfd->bhqd", phi_q, kv)
        den = torch.einsum("bhqf,bhf->bhq", phi_q, z)[..., None] + 1e-6
        o = num / den
        return (lambda x, *d: x.permute(*d))(o, 0, 2, 1, 3).reshape(B, S, D) @ wo

    def _B_ref(x, wq, wk, wv, wo):
        B, S, D = x.shape
        H = 32
        Dh = D // H
        q = (lambda x, *d: x.permute(*d))((x @ wq).reshape(B, S, H, Dh), 0, 2, 1, 3)
        k = x @ wk
        v = x @ wv
        scores = torch.einsum("bhqd,bkd->bhqk", q, k) * (Dh ** -0.5)
        p = _softmax(scores, axis=-1)
        o = torch.einsum("bhqk,bkd->bhqd", p, v)
        return (lambda x, *d: x.permute(*d))(o, 0, 2, 1, 3).reshape(B, S, H * Dh) @ wo

    a = _A_ref(A_x, A_wqkv, A_w_phi, A_wo)
    b = _B_ref(B_x, B_wq, B_wk, B_wv, B_wo)
    return torch.concatenate([a, b], axis=-1)
```

```python
import re

TRANS = ("v_exp_f32", "v_log_f32", "v_rcp_f32", "v_rsq_f32", "v_sqrt_f32", "v_sin_f32", "v_cos_f32")

def _regs(tok):
    tok = tok.strip()
    neg = tok.startswith("-")
    if neg: tok = tok[1:]
    if tok.startswith("|") and tok.endswith("|"): tok = tok[1:-1]
    m = re.fullmatch(r"([vsa])(\d+)", tok)
    if m: return m.group(1), {int(m.group(2))}
    m = re.fullmatch(r"([vsa])\[(\d+):(\d+)\]", tok)
    if m: return m.group(1), set(range(int(m.group(2)), int(m.group(3)) + 1))
    if tok == "vcc": return "s", {106, 107}
    if tok == "m0": return "s", {124}
    if tok == "exec": return "s", {126, 127}
    return None, set()

class Ins:
    __slots__ = ("text", "op", "cls", "vw", "vr", "sw", "sr", "a", "b", "c", "d", "passes", "ws", "lds", "wide")
    def __init__(self, text):
        self.text = text
        t = text.split(";")[0].strip()
        parts = t.split(None, 1)
        self.op = op = parts[0]
        rest = parts[1] if len(parts) > 1 else ""
        ops = [o.strip() for o in re.split(r",(?![^\[]*\])", rest)] if rest else []
        mods = ""
        if ops:
            lp = ops[-1].split(None, 1)
            ops[-1] = lp[0]
            mods = lp[1] if len(lp) > 1 else ""
        self.vw, self.vr, self.sw, self.sr = set(), set(), set(), set()
        self.a = self.b = self.c = self.d = set()
        self.passes = 0
        self.ws = 1
        self.lds = False
        self.wide = False
        def rd(tok):
            k, s = _regs(tok)
            if k == "v": self.vr |= s
            elif k == "s": self.sr |= s
        def wr(tok):
            k, s = _regs(tok)
            if k == "v": self.vw |= s
            elif k == "s": self.sw |= s
        if op == "s_nop":
            self.cls = "nop"; self.ws = int(ops[0], 0) + 1
        elif op.startswith("v_mfma"):
            self.cls = "mfma"
            self.passes = 8 if "32x32x16" in op else 4 if "16x16x32" in op else None
            assert self.passes
            self.d = _regs(ops[0])[1]; self.a = _regs(ops[1])[1]; self.b = _regs(ops[2])[1]
            k, s = _regs(ops[3]); self.c = s if k == "v" else set()
            self.vw = set(self.d); self.vr = self.a | self.b | self.c
        elif op.startswith("v_"):
            self.cls = "valu"
            if op.startswith("v_permlane"):
                for o in ops[:2]: wr(o); rd(o)
                self.cls = "permlane"
            else:
                wr(ops[0])
                for o in ops[1:]: rd(o)
                base = op.replace("_e32", "").replace("_e64", "")
                if base in ("v_fmac_f32", "v_pk_fmac_f16", "v_dot2c_f32_bf16"): rd(ops[0])
                if base in TRANS: self.cls = "trans"
                if base.startswith("v_dot"): self.cls = "dot"
                if base.startswith("v_readfirstlane") or base.startswith("v_readlane"): self.cls = "rdlane"
                if base.startswith("v_cndmask") and len(ops) == 3: self.sr |= {106, 107}
                if "dpp" in mods or "row_" in mods or "quad_perm" in mods: self.cls = "dpp"
        elif op.startswith("ds_"):
            self.cls = "ds"
            if op.startswith("ds_read") or op.startswith("ds_bpermute") or op.startswith("ds_permute") or "_rtn" in op or op.startswith("ds_swizzle"):
                wr(ops[0])
                for o in ops[1:]: rd(o)
            else:
                for o in ops: rd(o)
        elif op.startswith("buffer_") or op.startswith("global_"):
            self.cls = "vmem"
            allm = (mods + " " + " ".join(ops)).split()
            if "lds" in mods.split():
                self.lds = True
                for o in ops: rd(o)
                self.sr |= {124}
            elif "_load" in op:
                wr(ops[0])
                if "d16" in op: rd(ops[0])
                for o in ops[1:]: rd(o)
            else:
                for o in ops: rd(o)
                if "x3" in op or "x4" in op:
                    self.wide = True
                    self.a = _regs(ops[0] if op.startswith("buffer_") else ops[1])[1]
        elif op.startswith("s_"):
            self.cls = "salu"
            if op.startswith(("s_cmp", "s_cbranch", "s_branch", "s_waitcnt", "s_barrier", "s_endpgm", "s_setprio", "s_sleep", "s_bitcmp")):
                for o in ops: rd(o)
            else:
                if ops: wr(ops[0])
                for o in ops[1:]: rd(o)
        else:
            raise ValueError("unknown op " + text)

def need(p, c):
    n = 0
    valu_c = c.cls in ("valu", "trans", "permlane", "dot", "rdlane", "dpp")
    valu_p = p.cls in ("valu", "trans", "permlane", "dot", "rdlane", "dpp")
    if p.cls == "mfma":
        big = p.passes == 8
        if c.cls == "mfma":
            if p.d & (c.a | c.b): n = max(n, 12 if big else 8)
            if p.d & c.c and not (p.d == c.c and p.passes == c.passes): n = max(n, 10 if big else 6)
            if p.d & c.d and not (p.d == c.c and p.passes == c.passes): n = max(n, 10 if big else 6)
        elif valu_c or c.cls in ("ds", "vmem"):
            if p.d & (c.vr | c.vw): n = max(n, 12 if big else 8)
            if valu_c and (p.c & c.vw): n = max(n, 7 if big else 3)
    elif valu_p:
        if c.cls == "mfma" and p.vw & c.vr: n = max(n, 2)
        if p.cls == "trans" and valu_c and c.cls != "trans" and p.vw & (c.vr | c.vw): n = max(n, 1)
        if p.cls == "trans" and c.cls in ("ds", "vmem") and p.vw & c.vr: n = max(n, 1)
        if c.cls in ("permlane", "dpp") and p.vw & c.vr: n = max(n, 2)
        if c.cls == "rdlane" and p.vw & c.vr: n = max(n, 1)
        if p.cls == "dot":
            if p.vw & (c.vr | c.vw):
                same = c.cls == "dot" and c.op == p.op
                if not same: n = max(n, 3)
                else:
                    toks = [o.strip() for o in re.split(r",(?![^\[]*\])", c.text.split(None, 1)[1])]
                    ab = _regs(toks[1])[1] | _regs(toks[2])[1]
                    if p.vw & ab: n = max(n, 3)
        if p.sw:
            if c.cls == "vmem" and p.sw & c.sr: n = max(n, 5)
            if valu_c and p.sw & c.sr: n = max(n, 2 if c.cls != "rdlane" else 4)
            if c.cls == "salu" and p.sw & c.sr: n = max(n, 1)
    elif p.cls == "salu":
        if 124 in p.sw and c.lds: n = max(n, 1)
    elif p.cls == "vmem" and p.wide:
        if p.a & c.vw: n = max(n, 2 if valu_c else 1)
    return n

class Asm:
    def __init__(self):
        self.lines = []
        self.lbl = 0
        self.hist = []
        self.nops = 0
    def _pad(self, ins):
        dist = 0
        req = 0
        for p in reversed(self.hist):
            r = need(p, ins) - dist
            if r > req: req = r
            dist += p.ws
            if dist > 24: break
        return req
    def e(self, s):
        ins = Ins(s)
        req = self._pad(ins)
        if req > 0:
            nop = Ins(f"s_nop {req-1}")
            self.lines.append(("i", nop.text + "  ; auto"))
            self.hist.append(nop)
            self.nops += 1
        self.lines.append(("i", s))
        self.hist.append(ins)
        if len(self.hist) > 64: self.hist = self.hist[-40:]
    def c(self, s):
        self.lines.append(("c", "; " + s))
    def label(self, name):
        self.lines.append(("l", name + ":"))
    def raw(self, s):
        self.lines.append(("r", s))
    def newlabel(self, base="L"):
        self.lbl += 1
        return f"{base}_{self.lbl}"
    def fence(self):
        self.hist = []
    def mark(self):
        return len(self.lines)
    def check_loop(self, start, name=""):
        body = [Ins(t.split("  ; auto")[0]) for k, t in self.lines[start:] if k == "i"]
        seq = body + body
        for i in range(len(body), len(seq)):
            dist = 0
            for j in range(i - 1, max(-1, i - 40), -1):
                if j >= len(body):
                    dist += seq[j].ws; continue
                r = need(seq[j], seq[i]) - dist
                if r > 0:
                    raise RuntimeError(f"loop {name} back-edge hazard: '{seq[j].text}' -> '{seq[i].text}' short by {r}")
                dist += seq[j].ws
    def text(self):
        out = []
        for k, t in self.lines:
            out.append(t if k in ("l", "r") else "    " + t)
        return "\n".join(out) + "\n"

def vr(a, n=1):
    return f"v{a}" if n == 1 else f"v[{a}:{a+n-1}]"
def sr(a, n=1):
    return f"s{a}" if n == 1 else f"s[{a}:{a+n-1}]"

def kernel_header(A, name):
    A.raw(".text")
    A.raw(f".globl {name}")
    A.raw(".p2align 8")
    A.raw(f".type {name},@function")
    A.label(name)
    A.fence()

def kernel_desc(name, vgpr, sgpr=102):
    acc = min(256, (vgpr + 3) // 4 * 4)
    return f""".p2align 6
.amdhsa_kernel {name}
  .amdhsa_next_free_vgpr {vgpr}
  .amdhsa_next_free_sgpr {sgpr}
  .amdhsa_accum_offset {acc}
  .amdhsa_group_segment_fixed_size 0
  .amdhsa_kernarg_size 96
  .amdhsa_user_sgpr_count 2
  .amdhsa_user_sgpr_kernarg_segment_ptr 1
  .amdhsa_system_sgpr_workgroup_id_x 1
.end_amdhsa_kernel
"""

def srd(A, d, ptr_lo, nbytes, delta=0):
    if delta == 0:
        A.e(f"s_mov_b32 s{d}, s{ptr_lo}")
        A.e(f"s_and_b32 s{d+1}, s{ptr_lo+1}, 0xffff")
    elif isinstance(delta, int) and delta < 0:
        A.e(f"s_sub_u32 s{d}, s{ptr_lo}, {-delta}")
        A.e(f"s_subb_u32 s{d+1}, s{ptr_lo+1}, 0")
        A.e(f"s_and_b32 s{d+1}, s{d+1}, 0xffff")
    else:
        A.e(f"s_add_u32 s{d}, s{ptr_lo}, {delta}")
        A.e(f"s_addc_u32 s{d+1}, s{ptr_lo+1}, 0")
        A.e(f"s_and_b32 s{d+1}, s{d+1}, 0xffff")
    A.e(f"s_mov_b32 s{d+2}, {nbytes}")
    A.e(f"s_mov_b32 s{d+3}, 0x00020000")

def mfma32(A, d, a, b, c=None):
    cs = vr(d, 16) if c is None else "0" if c == "0" else vr(c, 16)
    A.e(f"v_mfma_f32_32x32x16_bf16 {vr(d,16)}, {vr(a,4)}, {vr(b,4)}, {cs}")

def mfma16(A, d, a, b, c=None):
    cs = vr(d, 4) if c is None else "0" if c == "0" else vr(c, 4)
    A.e(f"v_mfma_f32_16x16x32_bf16 {vr(d,4)}, {vr(a,4)}, {vr(b,4)}, {cs}")
```

```python
from asmlib import *
import struct

WS_QA = 0; WS_QB = 4 << 20; WS_KV = 8 << 20; WS_KVP = 9 << 20; WS_ZP = 13 << 20
WS_OA = 14 << 20; WS_OB = 18 << 20; WS_BYTES = 22 << 20
LOG2E = 1.4426950408889634
def f2u(x): return struct.unpack("<I", struct.pack("<f", x))[0]

K1_WSLOT = 3328
K1_SLOT = 8 * K1_WSLOT
K1_NS = 6
K1_LDS = K1_SLOT * K1_NS
K1_VGPR = 192

import os
DBG = int(os.environ.get("K1DBG", "0"))
NODMA = int(os.environ.get("NODMA", "0"))
NOMFMA = int(os.environ.get("NOMFMA", "0"))
NOLDS = int(os.environ.get("NOLDS", "0"))
def stamp(A, i):
    if DBG:
        A.e(f"s_memtime s[{70+2*i}:{71+2*i}]")
def dbg_dump(A, n):
    if not DBG: return
    L = A.newlabel("dbgskip")
    A.e("s_memrealtime s[86:87]")
    A.e("s_waitcnt lgkmcnt(0)")
    A.e("s_lshr_b32 s3, s2, 3")
    A.e(f"s_cmp_lg_u32 s3, {DBG-1}")
    A.e(f"s_cbranch_scc1 {L}")
    A.e("s_cmp_lg_u32 s34, 0")
    A.e(f"s_cbranch_scc1 {L}")
    A.e("s_load_dwordx2 s[88:89], s[0:1], 80")
    A.e("s_waitcnt lgkmcnt(0)")
    srd(A, 92, 88, 256)
    A.e("s_and_b32 s3, s2, 7")
    A.e("s_lshl_b32 s3, s3, 5")
    A.e("v_mov_b32 v1, 0")
    for i in range(1, n):
        A.e(f"s_sub_u32 s{70+2*i}, s{70+2*i}, s70")
        A.e(f"v_mov_b32 v2, s{70+2*i}")
        A.e(f"buffer_store_dword v2, v1, s[92:95], s3 offen offset:{4*i}")
    A.e("s_sub_u32 s86, s86, s84")
    A.e("v_mov_b32 v2, s86")
    A.e(f"buffer_store_dword v2, v1, s[92:95], s3 offen offset:28")
    A.label(L)

def gen_k1(A, name):
    kernel_header(A, name)
    Lend = "K1_end"
    A.e("s_cmp_ge_u32 s2, 256")
    A.e(f"s_cbranch_scc1 {Lend}")
    stamp(A, 0)
    if DBG: A.e("s_memrealtime s[84:85]")
    A.e("s_load_dwordx16 s[44:59], s[0:1], 0")
    A.e("s_load_dwordx2 s[60:61], s[0:1], 88")
    A.e("v_lshrrev_b32 v1, 6, v0")
    A.e("v_and_b32 v0, 63, v0")
    A.e("v_readfirstlane_b32 s34, v1")
    A.e("s_and_b32 s3, s2, 7")
    A.e("s_lshr_b32 s36, s2, 3")
    A.e("s_and_b32 s35, s3, 1")
    A.e("s_lshl_b32 s35, s35, 3")
    A.e("s_and_b32 s37, s36, 7")
    A.e("s_add_u32 s35, s35, s37")
    A.e("s_lshr_b32 s40, s3, 1")
    A.e("s_lshl_b32 s40, s40, 2")
    A.e("s_lshr_b32 s37, s36, 3")
    A.e("s_add_u32 s40, s40, s37")
    A.e("s_lshr_b32 s38, s34, 2")
    A.e("s_and_b32 s39, s34, 3")
    A.e("v_and_b32 v10, 15, v0")
    A.e("v_lshlrev_b32 v5, 6, v10")
    A.e("v_bfe_u32 v11, v0, 4, 1")
    A.e(f"v_mul_u32_u24 v11, {K1_WSLOT}, v11")
    A.e("v_add_u32 v5, v5, v11")
    A.e(f"s_mul_i32 s3, s38, {4*K1_WSLOT}")
    A.e("v_add_u32 v5, s3, v5")
    A.e("v_bfe_u32 v12, v0, 2, 2")
    A.e("v_lshrrev_b32 v13, 5, v0")
    A.e("v_xor_b32 v14, v13, v12")
    A.e("v_xor_b32 v15, 2, v14")
    A.e("v_lshl_add_u32 v6, v15, 4, v5")
    A.e("v_lshl_add_u32 v5, v14, 4, v5")
    A.e(f"v_mul_u32_u24 v7, {2*K1_WSLOT}, v13")
    A.e("v_lshl_add_u32 v7, v12, 6, v7")
    A.e("v_bfe_u32 v11, v0, 4, 1")
    A.e("v_lshl_add_u32 v7, v11, 5, v7")
    A.e("v_and_b32 v14, 3, v0")
    A.e("v_lshl_add_u32 v7, v14, 3, v7")
    A.e("s_lshl_b32 s3, s39, 8")
    A.e("s_add_u32 s3, s3, 1024")
    A.e("v_add_u32 v7, s3, v7")
    A.e("v_lshrrev_b32 v2, 2, v0")
    A.e("s_lshl_b32 s3, s35, 7")
    A.e("s_lshl_b32 s37, s34, 4")
    A.e("s_add_u32 s3, s3, s37")
    A.e("v_add_u32 v2, s3, v2")
    A.e("v_lshlrev_b32 v2, 11, v2")
    A.e("v_bfe_u32 v15, v0, 4, 2")
    A.e("v_xor_b32 v15, v15, v14")
    A.e("v_lshl_add_u32 v2, v15, 4, v2")
    A.e("v_lshrrev_b32 v3, 4, v0")
    A.e("v_lshlrev_b32 v3, 6, v3")
    A.e("v_lshl_add_u32 v3, v14, 4, v3")
    A.e("s_lshl_b32 s3, s34, 2")
    A.e("v_add_u32 v1, s3, v12")
    A.e(f"s_mul_i32 s31, s34, {K1_WSLOT}")
    A.e(f"s_add_u32 s41, s31, {K1_LDS}")
    A.e("s_mov_b32 s28, 0")
    A.e("s_mov_b32 s29, 0")
    A.e("s_mov_b32 s30, 0")
    A.e("s_mov_b32 s32, 0")
    A.e("s_mov_b32 s43, 0")
    A.e(f"s_mov_b32 s64, {(-5*K1_SLOT) & 0xffffffff}")
    for r in range(16, 80):
        A.e(f"v_mov_b32 v{r}, 0")
    A.e("s_waitcnt lgkmcnt(0)")
    srd(A, 24, 60, WS_BYTES)
    A.e("s_cmp_lt_u32 s40, 4")
    A.e("s_cbranch_scc1 K1_T0")
    A.e("s_cmp_lt_u32 s40, 12")
    A.e("s_cbranch_scc1 K1_T1")
    A.e("s_cmp_lt_u32 s40, 14")
    A.e("s_cbranch_scc1 K1_T2")
    A.e("s_branch K1_T3")
    for T in range(4):
        A.label(f"K1_T{T}")
        A.fence()
        k1_type(A, T)
        A.e("s_endpgm")
    A.label(Lend)
    A.e("s_endpgm")

ACC = lambda rt, ct: 16 + (rt * 2 + ct) * 16

def k1_type(A, T):
    isB = T >= 2
    pitch = 2048 if isB else 6144
    wbytes = 1024 * pitch
    D = 4 if isB else 3
    xptr = 52 if isB else 44
    wptr = 54 if isB else 46
    if T == 0:
        A.e("s_lshl_b32 s42, s40, 9")
        A.e("s_add_u32 s37, s42, 256")
    elif T == 1:
        A.e("s_sub_u32 s3, s40, 4")
        A.e("s_lshl_b32 s3, s3, 8")
        A.e("s_add_u32 s42, s3, 2048")
        A.e("s_add_u32 s37, s3, 4096")
    else:
        A.e("s_sub_u32 s3, s40, 12")
        A.e("s_lshl_b32 s42, s3, 9")
        A.e("s_add_u32 s37, s42, 256")
    srd(A, 8, xptr, 2048 * 2048)
    for (d, cb, off) in ((12, 42, 1024), (16, 37, 2048)):
        A.e(f"s_add_u32 s{d}, s{wptr}, s{cb}")
        A.e(f"s_addc_u32 s{d+1}, s{wptr+1}, 0")
        A.e(f"s_sub_u32 s{d}, s{d}, {off}")
        A.e(f"s_subb_u32 s{d+1}, s{d+1}, 0")
        A.e(f"s_and_b32 s{d+1}, s{d+1}, 0xffff")
        A.e(f"s_sub_u32 s{d+2}, {wbytes + off}, s{cb}")
        A.e(f"s_mov_b32 s{d+3}, 0x00020000")
    A.e(f"v_mul_u32_u24 v1, {pitch}, v1")
    A.e("v_add_u32 v3, v3, v1")
    if isB:
        srd(A, 20, 56 if T == 2 else 58, 65536 + 3072, -3072)
        A.e("s_lshl_b32 s3, s34, 8")
        A.e("v_lshl_add_u32 v4, v0, 2, s3")
        A.e("v_lshrrev_b32 v8, 4, v0")
        A.e("v_xor_b32 v8, v8, v12")
        A.e("v_lshlrev_b32 v8, 4, v8")
        A.e("v_lshl_add_u32 v8, v10, 6, v8")
        A.e("v_add_u32 v8, s31, v8")
        A.e("v_lshrrev_b32 v9, 4, v0")
        A.e(f"v_mul_u32_u24 v9, {2*K1_WSLOT}, v9")
        A.e("v_lshl_add_u32 v9, v12, 6, v9")
        A.e("v_lshl_add_u32 v9, v14, 3, v9")
        A.e("s_and_b32 s3, s40, 1")
        A.e("s_lshl_b32 s3, s3, 5")
        A.e("s_add_u32 s3, s3, 3072")
        A.e("v_add_u32 v9, s3, v9")
        for r in range(120, 124):
            A.e(f"v_mov_b32 v{r}, 0")
    if T == 1:
        srd(A, 20, 48, 65536)
        A.e("s_sub_u32 s3, s40, 4")
        A.e("s_lshl_b32 s3, s3, 2")
        A.e("s_add_u32 s36, s3, s39")
        A.e("s_lshl_b32 s3, s36, 11")
        A.e("v_and_b32 v8, 31, v0")
        A.e("v_lshlrev_b32 v8, 1, v8")
        A.e("v_lshl_add_u32 v8, v13, 8, v8")
        for t in range(2):
            for j in range(8):
                d = 16 * t + 8 * (j >> 2) + (j & 3)
                A.e(f"buffer_load_ushort v{124 + t*8 + j}, v8, s[20:23], s3 offen offset:{d*64}")

    def dma():
        A.e("s_mov_b32 m0, s31")
        A.e(f"s_add_u32 s31, s31, {K1_SLOT}")
        A.e("buffer_load_dwordx4 v2, s[8:11], s28 offen lds")
        A.e("buffer_load_dwordx4 v3, s[12:15], s29 offen offset:1024 lds")
        A.e("buffer_load_dwordx4 v3, s[16:19], s29 offen offset:2048 lds")
        if isB:
            A.e("buffer_load_dword v4, s[20:23], s30 offen offset:3072 lds")
            A.e("s_add_u32 s30, s30, 2048")
        A.e("s_add_u32 s28, s28, 64")
        A.e(f"s_add_u32 s29, s29, {32*pitch}")
        A.e("s_cmp_ge_u32 s31, s41")
        A.e(f"s_cselect_b32 s3, {K1_LDS}, 0")
        A.e("s_sub_u32 s31, s31, s3")

    S = [dict(X=[80, 84], W=[88, 92]), dict(X=[96, 100], W=[104, 108])]
    def rdX(t, rt):
        return f"ds_read_b128 {vr(S[t]['X'][rt],4)}, v{5+t} offset:{rt*2*K1_WSLOT}"
    def rdW(t, ct, h):
        return f"ds_read_b64_tr_b16 {vr(S[t]['W'][ct]+2*h,2)}, v7 offset:{t*4*K1_WSLOT + h*K1_WSLOT + ct*1024}"
    def mm(t, rt, ct):
        x, w = S[t]['X'][rt], S[t]['W'][ct]
        if NOMFMA: return
        if os.environ.get("M16"):
            mfma16(A, ACC(rt, ct) + 8*t, w, x); mfma16(A, ACC(rt, ct) + 8*t + 4, x, w); return
        if T == 1 and ct == 1: mfma32(A, ACC(rt, ct), x, w)
        else: mfma32(A, ACC(rt, ct), w, x)

    for s in range(5):
        dma()
    stamp(A, 1)
    A.e(f"s_waitcnt vmcnt({4*D})")
    A.e("s_barrier")
    stamp(A, 2)
    for q in (rdX(0, 0), rdW(0, 0, 0), rdW(0, 0, 1), rdW(0, 1, 0), rdW(0, 1, 1), rdX(0, 1)):
        A.e(q)
    L = f"K1_T{T}_loop"
    A.raw(".p2align 6")
    A.label(L)
    st = A.mark()
    A.e("s_waitcnt lgkmcnt(0)")
    mm(0, 0, 0); A.e(rdX(1, 0)); A.e(rdW(1, 0, 0))
    mm(0, 0, 1); A.e(rdW(1, 0, 1)); A.e(rdW(1, 1, 0))
    mm(0, 1, 0); A.e(rdW(1, 1, 1)); A.e(rdX(1, 1))
    A.e("s_cmp_ge_u32 s32, 28")
    mm(0, 1, 1)
    if isB:
        A.e("ds_read_b128 v[112:115], v8")
        A.e("ds_read_b64_tr_b16 v[116:117], v9")
        A.e(f"ds_read_b64_tr_b16 v[118:119], v9 offset:{K1_WSLOT}")
    A.e(f"s_cbranch_scc1 {L}_tw")
    A.e(f"s_waitcnt vmcnt({3*D})")
    A.label(f"{L}_back")
    A.e("s_barrier")
    A.e("s_add_u32 s43, s43, 1")
    A.e(f"s_cmp_eq_u32 s43, {K1_NS}")
    A.e(f"s_cselect_b32 s33, s64, {K1_SLOT}")
    A.e("s_cselect_b32 s43, 0, s43")
    A.e(f"s_waitcnt lgkmcnt({3 if isB else 0})")
    mm(1, 0, 0)
    A.e("v_add_u32 v5, s33, v5")
    A.e("v_add_u32 v7, s33, v7")
    A.e(rdX(0, 0)); A.e(rdW(0, 0, 0))
    mm(1, 0, 1)
    A.e(rdW(0, 0, 1)); A.e(rdW(0, 1, 0)); A.e(rdW(0, 1, 1)); A.e(rdX(0, 1))
    A.e(f"s_cmp_ge_u32 s32, {0 if NODMA else 27}")
    mm(1, 1, 0)
    A.e("v_add_u32 v6, s33, v6")
    A.e(f"s_cbranch_scc1 {L}_nodma")
    dma()
    A.label(f"{L}_nodma")
    if isB:
        A.e("s_waitcnt lgkmcnt(6)")
        if T == 2: mfma16(A, 120, 116, 112)
        else: mfma16(A, 120, 112, 116)
        A.e("v_add_u32 v8, s33, v8")
        A.e("v_add_u32 v9, s33, v9")
    A.e("s_add_u32 s32, s32, 1")
    A.e("s_cmp_lt_u32 s32, 32")
    mm(1, 1, 1)
    A.e(f"s_cbranch_scc1 {L}")
    A.check_loop(st, L)
    A.e(f"s_branch {L}_done")
    A.label(f"{L}_tw")
    A.e("s_cmp_eq_u32 s32, 28")
    A.e(f"s_cbranch_scc1 {L}_tw2")
    A.e("s_cmp_eq_u32 s32, 29")
    A.e(f"s_cbranch_scc1 {L}_tw1")
    A.e("s_waitcnt vmcnt(0)")
    A.e(f"s_branch {L}_back")
    A.label(f"{L}_tw2")
    A.e(f"s_waitcnt vmcnt({2*D})")
    A.e(f"s_branch {L}_back")
    A.label(f"{L}_tw1")
    A.e(f"s_waitcnt vmcnt({D})")
    A.e(f"s_branch {L}_back")
    A.label(f"{L}_done")
    A.fence()
    stamp(A, 3)
    A.e("s_nop 15")
    A.e("s_waitcnt lgkmcnt(0)")
    if T == 1: k1_epi_kv(A)
    else: k1_epi_q(A, T)
    if DBG:
        stamp(A, 4)
        A.e("s_waitcnt vmcnt(0)")
        stamp(A, 5)
        dbg_dump(A, 6)

def pack16(A, base):
    for i in range(8):
        A.e(f"v_cvt_pk_bf16_f32 v{base+i}, v{base+2*i}, v{base+2*i+1}")

def k1_epi_q(A, T):
    isB = T >= 2
    if isB: A.e("s_sub_u32 s3, s40, 12")
    else: A.e("s_mov_b32 s3, s40")
    A.e("s_lshl_b32 s3, s3, 3")
    A.e("s_add_u32 s3, s3, s39")
    A.e("s_lshl_b32 s3, s3, 17")
    A.e("s_lshl_b32 s36, s35, 13")
    A.e("s_add_u32 s3, s3, s36")
    A.e("s_lshl_b32 s36, s38, 12")
    A.e("s_add_u32 s3, s3, s36")
    if isB: A.e(f"s_add_u32 s3, s3, {WS_QB}")
    A.e(f"s_add_u32 s36, s3, {4*131072}")
    A.e("v_lshlrev_b32 v1, 4, v0")
    for rt in range(2):
        for ct in range(2):
            b = ACC(rt, ct)
            pack16(A, b)
            for t in range(2):
                A.e(f"buffer_store_dwordx4 {vr(b+4*t,4)}, v1, s[24:27], s{36 if ct else 3} offen offset:{rt*2048+t*1024}")
    if isB:
        if T == 2:
            c = f2u(LOG2E / 32 ** 0.5)
            for r in range(120, 124):
                A.e(f"v_mul_f32 v{r}, {c:#x}, v{r}")
        A.e("v_cvt_pk_bf16_f32 v120, v120, v121")
        A.e("v_cvt_pk_bf16_f32 v121, v122, v123")
        A.e("v_bfe_u32 v2, v0, 4, 1")
        A.e("v_lshlrev_b32 v2, 9, v2")
        A.e("v_lshl_add_u32 v2, v10, 4, v2")
        A.e("v_lshrrev_b32 v3, 5, v0")
        A.e("v_lshl_add_u32 v2, v3, 3, v2")
        A.e("s_lshl_b32 s3, s35, 2")
        A.e("s_lshr_b32 s36, s34, 1")
        A.e("s_add_u32 s3, s3, s36")
        A.e("s_lshl_b32 s3, s3, 12")
        A.e(f"s_add_u32 s3, s3, {WS_KV + (2048 if T == 3 else 0)}")
        A.e("s_and_b32 s36, s40, 1")
        A.e("s_and_b32 s37, s34, 1")
        a, b_ = (36, 37) if T == 2 else (37, 36)
        A.e(f"s_lshl_b32 s{a}, s{a}, 10")
        A.e(f"s_lshl_b32 s{b_}, s{b_}, 8")
        A.e("s_add_u32 s3, s3, s36")
        A.e("s_add_u32 s3, s3, s37")
        A.e("buffer_store_dwordx2 v[120:121], v2, s[24:27], s3 offen")

def dual_softmax(A, P, U, t0):
    mx, mn, d, sp, sn, x, y = t0, t0 + 1, t0 + 2, t0 + 4, t0 + 6, t0 + 8, t0 + 9
    A.e(f"v_max3_f32 v{mx}, v{P}, v{P+1}, v{P+2}")
    A.e(f"v_min3_f32 v{mn}, v{P}, v{P+1}, v{P+2}")
    for i in range(3, 15, 2):
        A.e(f"v_max3_f32 v{mx}, v{mx}, v{P+i}, v{P+i+1}")
        A.e(f"v_min3_f32 v{mn}, v{mn}, v{P+i}, v{P+i+1}")
    A.e(f"v_max_f32 v{mx}, v{mx}, v{P+15}")
    A.e(f"v_min_f32 v{mn}, v{mn}, v{P+15}")
    A.e(f"v_mov_b32 v{x}, v{mx}")
    A.e(f"v_mov_b32 v{y}, v{mn}")
    A.e(f"v_permlane32_swap_b32 v{mx}, v{x}")
    A.e(f"v_permlane32_swap_b32 v{mn}, v{y}")
    A.e(f"v_max_f32 v{mx}, v{mx}, v{x}")
    A.e(f"v_min_f32 v{mn}, v{mn}, v{y}")
    A.e(f"v_sub_f32 v{d}, v{mx}, v{mn}")
    A.e(f"v_mul_f32 v{mx}, {f2u(-LOG2E):#x}, v{mx}")
    A.e(f"v_mul_f32 v{d}, s62, v{d}")
    for i in range(0, 16, 2):
        A.e(f"v_pk_fma_f32 {vr(P+i,2)}, {vr(P+i,2)}, s[62:63], {vr(mx,2)} op_sel_hi:[1,1,0]")
        A.e(f"v_pk_add_f32 {vr(U+i,2)}, {vr(P+i,2)}, {vr(d,2)} op_sel_hi:[1,0]")
    for i in range(0, 16, 2):
        A.e(f"v_exp_f32 v{P+i}, v{P+i}")
        A.e(f"v_exp_f32 v{P+i+1}, v{P+i+1}")
        A.e(f"v_exp_f32 v{U+i}, -v{U+i}")
        A.e(f"v_exp_f32 v{U+i+1}, -v{U+i+1}")
        if i == 2:
            A.e(f"v_pk_add_f32 {vr(sp,2)}, {vr(P,2)}, {vr(P+2,2)}")
            A.e(f"v_pk_add_f32 {vr(sn,2)}, {vr(U,2)}, {vr(U+2,2)}")
        elif i > 2:
            A.e(f"v_pk_add_f32 {vr(sp,2)}, {vr(sp,2)}, {vr(P+i,2)}")
            A.e(f"v_pk_add_f32 {vr(sn,2)}, {vr(sn,2)}, {vr(U+i,2)}")
    A.e(f"v_add_f32 v{sp}, v{sp}, v{sp+1}")
    A.e(f"v_add_f32 v{sn}, v{sn}, v{sn+1}")
    A.e(f"v_permlane32_swap_b32 v{sp}, v{sn}")
    A.e(f"v_add_f32 v{sp}, v{sp}, v{sn}")
    A.e(f"v_rcp_f32 v{sp}, v{sp}")
    A.e(f"v_mov_b32 v{sn}, v{sp}")
    A.e(f"v_permlane32_swap_b32 v{sp}, v{sn}")
    for i in range(0, 16, 2):
        A.e(f"v_pk_mul_f32 {vr(P+i,2)}, {vr(P+i,2)}, {vr(sp,2)} op_sel_hi:[1,0]")
        A.e(f"v_pk_mul_f32 {vr(U+i,2)}, {vr(U+i,2)}, {vr(sn,2)} op_sel_hi:[1,0]")
        A.e(f"v_cvt_pk_bf16_f32 v{P+i//2}, v{P+i}, v{P+i+1}")
        A.e(f"v_cvt_pk_bf16_f32 v{U+i//2}, v{U+i}, v{U+i+1}")

PHI_BASE = 2 * K1_SLOT
PHI_PITCH = 136
PHI_WAVE = 64 * PHI_PITCH
XB_BASE = PHI_BASE + 8 * PHI_WAVE

def k1_epi_kv(A):
    Pr = [124, 140]
    KV = [156, 172]
    U = 80
    A.e(f"s_mov_b32 s62, {f2u(LOG2E):#x}")
    A.e(f"s_mov_b32 s63, {f2u(LOG2E):#x}")
    for i in range(8):
        A.e(f"v_lshl_or_b32 v{112+i}, v{124+2*i+1}, 16, v{124+2*i}")
    for rt in range(2):
        pack16(A, ACC(rt, 0))
    for rt in range(2):
        mfma32(A, Pr[rt], 112, ACC(rt, 0), "0")
        mfma32(A, Pr[rt], 116, ACC(rt, 0) + 4)
    for rt in range(2):
        pack16(A, ACC(rt, 1))
    A.e(f"s_mul_i32 s3, s34, {PHI_WAVE}")
    A.e(f"s_add_u32 s3, s3, {PHI_BASE}")
    A.e("v_and_b32 v1, 31, v0")
    A.e(f"v_mul_u32_u24 v1, {PHI_PITCH}, v1")
    A.e("v_lshl_add_u32 v1, v13, 3, v1")
    A.e("v_add_u32 v1, s3, v1")
    A.e("v_lshl_add_u32 v2, v13, 2, v12")
    A.e(f"v_mul_u32_u24 v2, {PHI_PITCH}, v2")
    A.e("v_bfe_u32 v3, v0, 4, 1")
    A.e("v_lshl_add_u32 v2, v3, 5, v2")
    A.e("v_lshl_add_u32 v2, v14, 3, v2")
    A.e("v_add_u32 v2, s3, v2")
    for rt in range(2):
        dual_softmax(A, Pr[rt], U, 96)
        for q in range(4):
            A.e(f"ds_write_b64 v1, {vr(Pr[rt]+2*q,2)} offset:{rt*32*PHI_PITCH + q*16}")
            A.e(f"ds_write_b64 v1, {vr(U+2*q,2)} offset:{rt*32*PHI_PITCH + 64 + q*16}")
    A.e("s_waitcnt lgkmcnt(0)")
    F = lambda ft, rt, t: 80 + ((ft * 2 + rt) * 2 + t) * 4
    for ft in range(2):
        for rt in range(2):
            for t in range(2):
                off = (rt * 32 + 16 * t) * PHI_PITCH + ft * 64
                A.e(f"ds_read_b64_tr_b16 {vr(F(ft,rt,t),2)}, v2 offset:{off}")
                A.e(f"ds_read_b64_tr_b16 {vr(F(ft,rt,t)+2,2)}, v2 offset:{off + 8*PHI_PITCH}")
    A.e("s_mov_b32 s3, 0x3f803f80")
    A.e("v_mov_b32 v4, 0")
    A.e("v_mov_b32 v5, 0")
    n = 0
    for ft in range(2):
        for rt in range(2):
            for t in range(2):
                n += 1
                A.e(f"s_waitcnt lgkmcnt({16 - 2*n})")
                mfma32(A, KV[ft], F(ft, rt, t), ACC(rt, 1) + 4 * t, "0" if (rt == 0 and t == 0) else None)
                for j in range(4):
                    A.e(f"v_dot2_f32_bf16 v{4+ft}, v{F(ft,rt,t)+j}, s3, v{4+ft}")
    A.e("v_permlane32_swap_b32 v4, v5")
    A.e("v_add_f32 v4, v4, v5")
    A.e("s_lshl_b32 s3, s36, 5")
    A.e("s_lshl_b32 s37, s35, 1")
    A.e("s_add_u32 s3, s3, s37")
    A.e("s_add_u32 s3, s3, s38")
    A.e("s_lshl_b32 s3, s3, 8")
    A.e(f"s_add_u32 s3, s3, {WS_ZP}")
    A.e("v_lshlrev_b32 v6, 2, v0")
    A.e("buffer_store_dword v4, v6, s[24:27], s3 offen")
    A.e("v_lshlrev_b32 v1, 4, v0")
    A.e("s_lshl_b32 s3, s39, 13")
    A.e(f"s_add_u32 s3, s3, {XB_BASE}")
    A.e("v_add_u32 v2, s3, v1")
    A.e("s_lshl_b32 s3, s36, 4")
    A.e("s_add_u32 s3, s3, s35")
    A.e("s_lshl_b32 s3, s3, 1")
    A.e("s_add_u32 s3, s3, s38")
    A.e("s_lshl_b32 s3, s3, 12")
    A.e(f"s_add_u32 s3, s3, {WS_KVP}")
    A.e("s_cmp_eq_u32 s38, 0")
    A.e("s_nop 7")
    A.e("s_cbranch_scc0 K1_kv_wm1")
    hist = list(A.hist)
    for wm in range(2):
        if wm == 1:
            A.label("K1_kv_wm1")
            A.hist = list(hist)
        keep, send = KV[wm], KV[1 - wm]
        for rq in range(4):
            A.e(f"ds_write_b128 v2, {vr(send+4*rq,4)} offset:{(1-wm)*4096 + rq*1024}")
        A.e("s_waitcnt lgkmcnt(0)")
        A.e("s_barrier")
        for rq in range(4):
            A.e(f"ds_read_b128 {vr(80+4*rq,4)}, v2 offset:{wm*4096 + rq*1024}")
        for rq in range(4):
            A.e(f"s_waitcnt lgkmcnt({3-rq})")
            A.e(f"v_pk_add_f32 {vr(keep+4*rq,2)}, {vr(keep+4*rq,2)}, {vr(80+4*rq,2)}")
            A.e(f"v_pk_add_f32 {vr(keep+4*rq+2,2)}, {vr(keep+4*rq+2,2)}, {vr(80+4*rq+2,2)}")
            A.e(f"buffer_store_dwordx4 {vr(keep+4*rq,4)}, v1, s[24:27], s3 offen offset:{rq*1024}")
        if wm == 0:
            if DBG:
                stamp(A, 4)
                A.e("s_waitcnt vmcnt(0)")
                stamp(A, 5)
                dbg_dump(A, 6)
            A.e("s_endpgm")
```

```python
from asmlib import *
from gen_k1 import *
import os

K2_CH = 32768
K2_NB = 4
K2_KVS = K2_CH * K2_NB
K2_ZS = K2_KVS + 4096
K2_LDS = K2_ZS + 256
K2_VGPR = 232

Q = 8
KF = 16
VF = 24
SB = [32, 48]
CM = 64
PF = 80
OA_ = 88
LS = 104
SEL = 108
KVP = 112
ZP = 176
QA = 180
WP = 188
T0 = 204

def gen_k2(A, name):
    kernel_header(A, name)
    A.e("s_cmp_ge_u32 s2, 256")
    A.e("s_cbranch_scc1 K2_end")
    stamp(A, 0)
    if DBG: A.e("s_memrealtime s[84:85]")
    A.e("s_load_dwordx2 s[48:49], s[0:1], 16")
    A.e("s_load_dwordx2 s[60:61], s[0:1], 88")
    A.e("v_lshrrev_b32 v1, 6, v0")
    A.e("v_and_b32 v0, 63, v0")
    A.e("v_readfirstlane_b32 s34, v1")
    A.e("s_and_b32 s3, s2, 7")
    A.e("s_lshr_b32 s36, s2, 3")
    A.e("s_lshl_b32 s35, s3, 2")
    A.e("s_lshr_b32 s37, s36, 3")
    A.e("s_add_u32 s35, s35, s37")
    A.e("s_and_b32 s36, s36, 7")
    A.e("s_lshl_b32 s36, s36, 3")
    A.e("s_add_u32 s36, s36, s34")
    A.e("v_lshlrev_b32 v1, 4, v0")
    A.e("v_lshrrev_b32 v7, 5, v0")
    A.e("v_lshlrev_b32 v2, 2, v0")
    A.e("v_mov_b32 v3, 0")
    A.e(f"ds_write_b32 v2, v3 offset:{K2_ZS - 65536 * 2}" if False else f"v_add_u32 v6, {K2_ZS}, v2")
    A.e("ds_write_b32 v6, v3")
    A.e("v_lshrrev_b32 v3, 2, v0")
    A.e("v_xor_b32 v3, v3, v0")
    A.e("v_and_b32 v3, 4, v3")
    A.e("v_and_b32 v4, 3, v0")
    A.e("v_or_b32 v3, v3, v4")
    A.e("v_cmp_eq_u32 vcc, 0, v3")
    A.e("v_mov_b32 v4, 0x3f803f80")
    A.e("v_mov_b32 v5, 0")
    for i in range(4):
        A.e(f"v_cndmask_b32 v{SEL+i}, v5, v4, vcc")
    for i in range(16):
        A.e(f"v_mov_b32 v{OA_+i}, 0")
    for i in range(4):
        A.e(f"v_mov_b32 v{LS+i}, 0")
    A.e("s_lshl_b32 s30, s34, 12")
    A.e("s_mov_b32 s31, s30")
    A.e(f"s_add_u32 s28, s30, {WS_KV}")
    A.e("s_mov_b32 s32, 0")
    A.e("s_lshl_b32 s38, s35, 17")
    A.e("s_lshl_b32 s39, s36, 11")
    A.e("s_add_u32 s38, s38, s39")
    A.e(f"s_add_u32 s39, s38, {WS_QB}")
    A.e("s_waitcnt lgkmcnt(0)")
    srd(A, 24, 60, WS_BYTES)
    srd(A, 20, 48, 65536)
    A.e(f"buffer_load_dwordx4 {vr(Q,4)}, v1, s[24:27], s39 offen")
    A.e(f"buffer_load_dwordx4 {vr(Q+4,4)}, v1, s[24:27], s39 offen offset:1024")
    def dma():
        A.e("s_mov_b32 m0, s31")
        A.e(f"s_add_u32 s31, s31, {K2_CH}")
        for i in range(4):
            A.e(f"buffer_load_dwordx4 v1, s[24:27], s28 offen offset:{i*1024} lds")
        A.e(f"s_add_u32 s28, s28, {K2_CH}")
        A.e(f"s_and_b32 s31, s31, {K2_CH*K2_NB - 1}")
    for c in range(3): dma()
    A.e("v_mov_b32 v5, v1")
    A.e(f"v_add_u32 v4, {K2_CH}, v1")
    stamp(A, 1)
    A.e("s_waitcnt vmcnt(8)")
    A.e("s_barrier")
    stamp(A, 2)
    A.e(f"ds_read_b128 {vr(KF,4)}, v5")
    A.e(f"ds_read_b128 {vr(KF+4,4)}, v5 offset:1024")
    A.e(f"ds_read_b128 {vr(VF,4)}, v5 offset:2048")
    A.e(f"ds_read_b128 {vr(VF+4,4)}, v5 offset:3072")
    A.e("s_waitcnt lgkmcnt(2)")
    mfma32(A, SB[0], KF, Q, "0")
    mfma32(A, SB[0], KF + 4, Q + 4)
    def rowmax(S, m, x):
        A.e(f"v_max3_f32 v{m}, v{S}, v{S+1}, v{S+2}")
        for i in range(3, 15, 2):
            A.e(f"v_max3_f32 v{m}, v{m}, v{S+i}, v{S+i+1}")
        A.e(f"v_max_f32 v{m}, v{m}, v{S+15}")
    rowmax(SB[0], T0, T0 + 1)
    A.e(f"v_mov_b32 v{T0+1}, v{T0}")
    A.e(f"v_permlane32_swap_b32 v{T0}, v{T0+1}")
    A.e(f"v_max_f32 v{T0}, v{T0}, v{T0+1}")
    for i in range(16):
        A.e(f"v_sub_f32 v{CM+i}, 0, v{T0}")
    for i in range(16):
        A.e(f"v_sub_f32 v{SB[0]+i}, v{SB[0]+i}, v{T0}")
    A.e(f"ds_read_b128 {vr(KF,4)}, v5 offset:4096")
    A.e(f"ds_read_b128 {vr(KF+4,4)}, v5 offset:{4096+1024}")

    A.raw(".p2align 6")
    A.label("K2_chunk")
    st = A.mark()
    A.e("s_sub_u32 s3, s32, 1")
    A.e("s_cmp_lt_u32 s3, 2")
    A.e("s_cbranch_scc1 K2_w42")
    A.e("s_cmp_ge_u32 s32, 6")
    A.e("s_cbranch_scc1 K2_w0")
    A.e("s_waitcnt vmcnt(4)")
    A.label("K2_wback")
    A.e("s_barrier")
    A.e("s_cmp_ge_u32 s32, 5")
    A.e("s_cbranch_scc1 K2_nodma")
    dma()
    A.e("s_cmp_lg_u32 s32, 0")
    A.e("s_cbranch_scc1 K2_nodma")
    A.e("s_lshl_b32 s3, s35, 17")
    A.e("s_lshl_b32 s37, s34, 10")
    A.e("s_add_u32 s3, s3, s37")
    A.e(f"s_add_u32 s3, s3, {WS_KVP}")
    for m in range(16):
        A.e(f"buffer_load_dwordx4 {vr(KVP+4*m,4)}, v1, s[24:27], s3 offen")
        A.e("s_add_u32 s3, s3, 8192")
    A.e("s_lshl_b32 s3, s35, 13")
    A.e("s_add_u32 s3, s3, s37")
    A.e(f"s_add_u32 s3, s3, {WS_ZP}")
    for m in range(4):
        A.e(f"buffer_load_dword v{ZP+m}, v2, s[24:27], s3 offen offset:{m*256}")
    A.e(f"buffer_load_dwordx4 {vr(QA,4)}, v1, s[24:27], s38 offen")
    A.e(f"buffer_load_dwordx4 {vr(QA+4,4)}, v1, s[24:27], s38 offen offset:1024")
    A.e("s_lshl_b32 s3, s35, 11")
    A.e("v_and_b32 v3, 31, v0")
    A.e("v_lshlrev_b32 v3, 1, v3")
    A.e("v_lshl_add_u32 v3, v7, 8, v3")
    for t in range(2):
        for j in range(8):
            d = 16 * t + 8 * (j >> 2) + (j & 3)
            A.e(f"buffer_load_ushort v{WP + t*8 + j}, v3, s[20:23], s3 offen offset:{d*64}")
    A.label("K2_nodma")
    for j in range(8):
        k2_tile(A, j)
    A.e("v_mov_b32 v5, v4")
    A.e(f"v_add_u32 v4, {K2_CH}, v4")
    A.e(f"v_and_b32 v4, {K2_CH*K2_NB - 1}, v4")
    A.e("s_add_u32 s32, s32, 1")
    A.e("s_cmp_lt_u32 s32, 8")
    A.e("s_cbranch_scc1 K2_chunk")
    A.check_loop(st, "K2")
    A.e("s_branch K2_attn_done")
    A.label("K2_w42")
    A.e("s_waitcnt vmcnt(42)")
    A.e("s_branch K2_wback")
    A.label("K2_w0")
    A.e("s_waitcnt vmcnt(0)")
    A.e("s_branch K2_wback")
    A.label("K2_attn_done")
    A.fence()
    stamp(A, 3)
    A.e("s_nop 15")
    A.e("s_waitcnt lgkmcnt(0)")
    A.e(f"v_cmp_nlt_f32 vcc, v{LS}, {f2u(2.0**60):#x}" if False else f"v_mov_b32 v3, {f2u(2.0**60):#x}")
    A.e(f"v_cmp_nlt_f32 vcc, v{LS}, v3")
    A.e("s_nop 4")
    A.e("s_cmp_eq_u64 vcc, 0")
    A.e("s_cbranch_scc0 K2_fallback")
    A.label("K2_fin")
    A.e(f"v_rcp_f32 v{LS}, v{LS}")
    for i in range(8):
        A.e(f"v_lshl_or_b32 v{KF+i}, v{WP+2*i+1}, 16, v{WP+2*i}")
    mfma32(A, SB[0], KF, QA, "0")
    mfma32(A, SB[0], KF + 4, QA + 4)
    for i in range(0, 16, 2):
        A.e(f"v_pk_mul_f32 {vr(OA_+i,2)}, {vr(OA_+i,2)}, {vr(LS,2)} op_sel_hi:[1,0]")
        A.e(f"v_cvt_pk_bf16_f32 v{OA_+i//2}, v{OA_+i}, v{OA_+i+1}")
    A.e("s_lshl_b32 s40, s36, 16")
    A.e("s_lshl_b32 s3, s35, 11")
    A.e("s_add_u32 s40, s40, s3")
    A.e(f"s_add_u32 s41, s40, {WS_OB}")
    A.e(f"s_add_u32 s40, s40, {WS_OA}")
    A.e(f"buffer_store_dwordx4 {vr(OA_,4)}, v1, s[24:27], s41 offen")
    A.e(f"buffer_store_dwordx4 {vr(OA_+4,4)}, v1, s[24:27], s41 offen offset:1024")
    for m in range(1, 16):
        A.e(f"v_pk_add_f32 {vr(KVP,2)}, {vr(KVP,2)}, {vr(KVP+4*m,2)}")
        A.e(f"v_pk_add_f32 {vr(KVP+2,2)}, {vr(KVP+2,2)}, {vr(KVP+4*m+2,2)}")
    A.e(f"v_cvt_pk_bf16_f32 v{KVP}, v{KVP}, v{KVP+1}")
    A.e(f"v_cvt_pk_bf16_f32 v{KVP+1}, v{KVP+2}, v{KVP+3}")
    A.e("s_lshr_b32 s3, s34, 1")
    A.e("s_lshl_b32 s3, s3, 10")
    A.e("s_and_b32 s37, s34, 1")
    A.e("s_lshl_b32 s37, s37, 3")
    A.e("s_add_u32 s3, s3, s37")
    A.e(f"s_add_u32 s3, s3, {K2_KVS}")
    A.e("v_add_u32 v3, s3, v1")
    A.e(f"ds_write_b64 v3, {vr(KVP,2)}")
    A.e(f"v_pk_add_f32 {vr(ZP,2)}, {vr(ZP,2)}, {vr(ZP+2,2)}")
    A.e(f"v_add_f32 v{ZP}, v{ZP}, v{ZP+1}")
    A.e(f"ds_add_f32 v6, v{ZP}")
    A.e(f"s_mov_b32 s62, {f2u(LOG2E):#x}")
    A.e(f"s_mov_b32 s63, {f2u(LOG2E):#x}")
    A.e("s_waitcnt lgkmcnt(0)")
    A.e("s_barrier")
    KT = KVP + 16
    ZF = KVP + 32
    A.e(f"v_add_u32 v3, {K2_KVS}, v1")
    for i in range(4):
        A.e(f"ds_read_b128 {vr(KT+4*i,4)}, v3 offset:{i*1024}")
    A.e("v_lshlrev_b32 v3, 4, v7")
    A.e(f"v_add_u32 v3, {K2_ZS}, v3")
    for i in range(8):
        A.e(f"ds_read_b128 {vr(ZF+4*i,4)}, v3 offset:{i*32}")
    dual_softmax(A, SB[0], SB[1], T0)
    A.e("s_waitcnt lgkmcnt(0)")
    for i in range(16):
        A.e(f"v_cvt_pk_bf16_f32 v{ZF+i}, v{ZF+2*i}, v{ZF+2*i+1}")
    NUM, DEN = CM, OA_
    for ft in range(2):
        for t in range(2):
            i = ft * 2 + t
            mfma32(A, DEN, ZF + 4 * i, SB[ft] + 4 * t, "0" if i == 0 else None)
    for ft in range(2):
        for t in range(2):
            i = ft * 2 + t
            mfma32(A, NUM, KT + 4 * i, SB[ft] + 4 * t, "0" if i == 0 else None)
    A.e(f"v_add_f32 v{T0}, {f2u(1e-6):#x}, v{DEN}")
    A.e(f"v_rcp_f32 v{T0}, v{T0}")
    for i in range(0, 16, 2):
        A.e(f"v_pk_mul_f32 {vr(NUM+i,2)}, {vr(NUM+i,2)}, {vr(T0,2)} op_sel_hi:[1,0]")
        A.e(f"v_cvt_pk_bf16_f32 v{NUM+i//2}, v{NUM+i}, v{NUM+i+1}")
    A.e(f"buffer_store_dwordx4 {vr(NUM,4)}, v1, s[24:27], s40 offen")
    A.e(f"buffer_store_dwordx4 {vr(NUM+4,4)}, v1, s[24:27], s40 offen offset:1024")
    if DBG:
        stamp(A, 4)
        A.e("s_waitcnt vmcnt(0)")
        stamp(A, 5)
        dbg_dump(A, 6)
    A.e("s_endpgm")

    A.label("K2_fallback")
    A.fence()
    A.e("s_waitcnt vmcnt(0)")
    A.e(f"s_mov_b32 s28, {WS_KV}")
    A.e(f"v_mov_b32 v{T0}, 0xff800000")
    A.label("K2_fb1")
    st = A.mark()
    A.e(f"buffer_load_dwordx4 {vr(KF,4)}, v1, s[24:27], s28 offen")
    A.e(f"buffer_load_dwordx4 {vr(KF+4,4)}, v1, s[24:27], s28 offen offset:1024")
    A.e("s_add_u32 s28, s28, 4096")
    A.e("s_waitcnt vmcnt(0)")
    mfma32(A, SB[0], KF, Q, "0")
    mfma32(A, SB[0], KF + 4, Q + 4)
    for i in range(0, 16, 2):
        A.e(f"v_max3_f32 v{T0}, v{T0}, v{SB[0]+i}, v{SB[0]+i+1}")
    A.e(f"s_cmp_lt_u32 s28, {WS_KV + 262144}")
    A.e("s_cbranch_scc1 K2_fb1")
    A.check_loop(st, "fb1")
    A.e(f"v_mov_b32 v{T0+1}, v{T0}")
    A.e(f"v_permlane32_swap_b32 v{T0}, v{T0+1}")
    A.e(f"v_max_f32 v{T0}, v{T0}, v{T0+1}")
    for i in range(16):
        A.e(f"v_sub_f32 v{CM+i}, 0, v{T0}")
        A.e(f"v_mov_b32 v{OA_+i}, 0")
    for i in range(4):
        A.e(f"v_mov_b32 v{LS+i}, 0")
    A.e(f"s_mov_b32 s28, {WS_KV}")
    A.label("K2_fb2")
    st = A.mark()
    for i in range(4):
        A.e(f"buffer_load_dwordx4 {vr(KF+4*i,4)}, v1, s[24:27], s28 offen offset:{i*1024}")
    A.e("s_add_u32 s28, s28, 4096")
    A.e("s_waitcnt vmcnt(0)")
    mfma32(A, SB[0], KF, Q, CM)
    mfma32(A, SB[0], KF + 4, Q + 4)
    for i in range(16):
        A.e(f"v_exp_f32 v{SB[0]+i}, v{SB[0]+i}")
    for i in range(8):
        A.e(f"v_cvt_pk_bf16_f32 v{PF+i}, v{SB[0]+2*i}, v{SB[0]+2*i+1}")
    mfma32(A, OA_, VF, PF)
    mfma32(A, OA_, VF + 4, PF + 4)
    mfma16(A, LS, SEL, PF)
    mfma16(A, LS, SEL, PF + 4)
    A.e(f"s_cmp_lt_u32 s28, {WS_KV + 262144}")
    A.e("s_nop 7")
    A.e("s_cbranch_scc1 K2_fb2")
    A.check_loop(st, "fb2")
    A.e("s_nop 15")
    A.e("s_branch K2_fin")
    A.label("K2_end")
    A.e("s_endpgm")

def k2_tile(A, j):
    S, N = SB[j & 1], SB[(j + 1) & 1]
    def ex(a, b):
        for i in range(a, b): A.e(f"v_exp_f32 v{S+i}, v{S+i}")
    def cv(a, b):
        for i in range(a, b): A.e(f"v_cvt_pk_bf16_f32 v{PF+i}, v{S+2*i}, v{S+2*i+1}")
    def addr(t):
        return ("v5", t * 4096) if t < 8 else ("v4", (t - 8) * 4096)
    A.e("s_waitcnt lgkmcnt(0)")
    mfma32(A, N, KF, Q, CM)
    ex(0, 4)
    mfma32(A, N, KF + 4, Q + 4)
    ex(4, 8)
    r, o = addr(j + 2)
    A.e(f"ds_read_b128 {vr(KF,4)}, {r} offset:{o}")
    A.e(f"ds_read_b128 {vr(KF+4,4)}, {r} offset:{o+1024}")
    cv(0, 4)
    ex(8, 10)
    mfma32(A, OA_, VF, PF)
    ex(10, 14)
    mfma16(A, LS, SEL, PF)
    ex(14, 16)
    cv(4, 8)
    r, o = addr(j + 1)
    A.e(f"ds_read_b128 {vr(VF,4)}, {r} offset:{o+2048}")
    A.e("s_nop 0")
    mfma32(A, OA_, VF + 4, PF + 4)
    mfma16(A, LS, SEL, PF + 4)
    A.e(f"ds_read_b128 {vr(VF+4,4)}, {r} offset:{o+3072}")
```

```python
from asmlib import *
from gen_k1 import *
import os

K3_SLOT = 32768
K3_NS = 5
K3_LDS = K3_SLOT * K3_NS
K3_VGPR = 128
NSS = 16

def gen_k3(A, name):
    KIDX[0] = 2
    A.stb = os.environ.get("STB3", "")
    kernel_header(A, name)
    A.e("s_cmp_ge_u32 s2, 256")
    A.e("s_cbranch_scc1 K3_end")
    stamp(A, 0)
    if DBG: A.e("s_memrealtime s[84:85]")
    A.e("s_load_dwordx2 s[44:45], s[0:1], 24")
    A.e("s_load_dwordx4 s[48:51], s[0:1], 64")
    A.e("s_load_dwordx2 s[60:61], s[0:1], 88")
    A.e("v_lshrrev_b32 v1, 6, v0")
    A.e("v_and_b32 v0, 63, v0")
    A.e("v_readfirstlane_b32 s34, v1")
    A.e("s_and_b32 s3, s2, 7")
    A.e("s_lshr_b32 s36, s2, 3")
    A.e("s_lshr_b32 s42, s3, 2")
    A.e("s_and_b32 s35, s3, 1")
    A.e("s_lshl_b32 s35, s35, 3")
    A.e("s_and_b32 s37, s36, 7")
    A.e("s_add_u32 s35, s35, s37")
    A.e("s_bfe_u32 s40, s3, 0x10001")
    A.e("s_lshl_b32 s40, s40, 2")
    A.e("s_lshr_b32 s37, s36, 3")
    A.e("s_add_u32 s40, s40, s37")
    A.e("v_lshlrev_b32 v1, 4, v0")
    A.e("s_lshl_b32 s28, s42, 22")
    A.e("s_lshl_b32 s3, s35, 18")
    A.e("s_add_u32 s28, s28, s3")
    A.e("s_lshr_b32 s3, s34, 1")
    A.e("s_lshl_b32 s3, s3, 16")
    A.e("s_add_u32 s28, s28, s3")
    A.e("s_and_b32 s39, s34, 1")
    A.e("s_lshl_b32 s3, s39, 11")
    A.e("s_add_u32 s28, s28, s3")
    A.e(f"s_add_u32 s28, s28, {WS_OA}")
    A.e("v_bfe_u32 v12, v0, 2, 2")
    A.e("v_and_b32 v14, 3, v0")
    A.e("v_lshrrev_b32 v2, 4, v0")
    A.e("v_lshlrev_b32 v2, 6, v2")
    A.e("v_lshl_add_u32 v2, v12, 11, v2")
    A.e("v_lshl_add_u32 v2, v14, 4, v2")
    A.e("v_add_u32 v3, 7168, v2")
    A.e("s_lshl_b32 s29, s34, 14")
    A.e("s_lshl_b32 s3, s40, 8")
    A.e("s_add_u32 s29, s29, s3")
    A.e("s_lshl_b32 s31, s34, 12")
    A.e(f"s_add_u32 s41, s31, {K3_LDS}")
    A.e("s_cmp_eq_u32 s42, 0")
    A.e("s_waitcnt lgkmcnt(0)")
    A.e("s_cselect_b32 s44, s44, s48")
    A.e("s_cselect_b32 s45, s45, s49")
    srd(A, 24, 60, WS_BYTES)
    srd(A, 12, 44, 2097152 + 2048, -2048)
    def dma():
        A.e("s_mov_b32 m0, s31")
        A.e(f"s_add_u32 s31, s31, {K3_SLOT}")
        A.e("buffer_load_dwordx4 v1, s[24:27], s28 offen lds")
        A.e("buffer_load_dwordx4 v2, s[12:15], s29 offen offset:2048 lds")
        A.e("buffer_load_dwordx4 v1, s[24:27], s28 offen offset:1024 lds")
        A.e("buffer_load_dwordx4 v3, s[12:15], s29 offen offset:3072 lds")
        A.e("s_add_u32 s28, s28, 4096")
        A.e(f"s_add_u32 s29, s29, {64*2048}")
        A.e("s_cmp_ge_u32 s31, s41")
        A.e(f"s_cselect_b32 s3, {K3_LDS}, 0")
        A.e("s_sub_u32 s31, s31, s3")
    for s in range(K3_NS - 1): dma()
    stamp(A, 1)
    A.e("s_lshr_b32 s43, s34, 2")
    A.e("s_bfe_u32 s38, s34, 0x10001")
    A.e("v_lshrrev_b32 v13, 5, v0")
    A.e("s_lshl_b32 s3, s38, 2")
    A.e("s_add_u32 s3, s3, s43")
    A.e("s_lshl_b32 s3, s3, 12")
    A.e("v_add_u32 v5, s3, v1")
    A.e("v_mov_b32 v6, v5")
    A.e("v_lshlrev_b32 v7, 10, v13")
    A.e("v_lshl_add_u32 v7, v12, 6, v7")
    A.e("v_bfe_u32 v11, v0, 4, 1")
    A.e("v_lshl_add_u32 v7, v11, 5, v7")
    A.e("v_lshl_add_u32 v7, v14, 3, v7")
    A.e("s_lshl_b32 s3, s43, 14")
    A.e("s_lshl_b32 s37, s39, 9")
    A.e("s_add_u32 s3, s3, s37")
    A.e("s_add_u32 s3, s3, 2048")
    A.e("v_add_u32 v7, s3, v7")
    A.e("v_mov_b32 v8, v7")
    A.e("s_mov_b32 s32, 0")
    A.e("s_mov_b32 s46, 0")
    A.e(f"s_mov_b32 s64, {(-(K3_NS-1)*K3_SLOT) & 0xffffffff}")
    for r in range(16, 80):
        A.e(f"v_mov_b32 v{r}, 0")
    srd(A, 16, 50, 2048 * 4096)
    A.e("s_lshl_b32 s47, s35, 19")
    A.e("s_lshl_b32 s3, s38, 18")
    A.e("s_add_u32 s47, s47, s3")
    A.e("s_lshl_b32 s3, s43, 17")
    A.e("s_add_u32 s47, s47, s3")
    A.e("s_lshl_b32 s3, s42, 11")
    A.e("s_add_u32 s47, s47, s3")
    A.e("s_lshl_b32 s3, s40, 8")
    A.e("s_add_u32 s47, s47, s3")
    A.e("s_lshl_b32 s3, s39, 7")
    A.e("s_add_u32 s47, s47, s3")
    S = [dict(X=[80, 84], W=[88, 92]), dict(X=[96, 100], W=[104, 108])]
    def rdX(t, rt):
        return f"ds_read_b128 {vr(S[t]['X'][rt],4)}, v{5+t} offset:{rt*8192 + t*1024}"
    def rdW(t, ct, s):
        return f"ds_read_b64_tr_b16 {vr(S[t]['W'][ct]+2*s,2)}, v{7+t} offset:{(2*t+s)*4096 + ct*256}"
    def mm(t, rt, ct):
        mfma32(A, ACC(rt, ct), S[t]['W'][ct], S[t]['X'][rt])
    D = 4
    PD = K3_NS - 1
    A.e(f"s_waitcnt vmcnt({(PD-1)*D})")
    A.e("s_barrier")
    stamp(A, 2)
    for q in (rdX(0, 0), rdW(0, 0, 0), rdW(0, 0, 1), rdW(0, 1, 0), rdW(0, 1, 1), rdX(0, 1)):
        A.e(q)
    L = "K3_loop"
    A.raw(".p2align 6")
    A.label(L)
    st = A.mark()
    A.e("s_waitcnt lgkmcnt(0)")
    mm(0, 0, 0); A.e(rdX(1, 0)); A.e(rdW(1, 0, 0))
    mm(0, 0, 1); A.e(rdW(1, 0, 1)); A.e(rdW(1, 1, 0))
    mm(0, 1, 0); A.e(rdW(1, 1, 1)); A.e(rdX(1, 1))
    A.e(f"s_cmp_ge_u32 s32, {NSS - PD + 1}")
    mm(0, 1, 1)
    A.e(f"s_cbranch_scc1 {L}_tw")
    A.e(f"s_waitcnt vmcnt({(PD-2)*D})")
    A.label(f"{L}_back")
    A.e("s_barrier")
    A.e("s_add_u32 s46, s46, 1")
    A.e(f"s_cmp_eq_u32 s46, {K3_NS}")
    A.e(f"s_cselect_b32 s33, s64, {K3_SLOT}")
    A.e("s_cselect_b32 s46, 0, s46")
    A.e("s_waitcnt lgkmcnt(0)")
    mm(1, 0, 0)
    A.e("v_add_u32 v5, s33, v5")
    A.e("v_add_u32 v7, s33, v7")
    A.e(rdX(0, 0)); A.e(rdW(0, 0, 0))
    mm(1, 0, 1)
    A.e(rdW(0, 0, 1)); A.e(rdW(0, 1, 0)); A.e(rdW(0, 1, 1)); A.e(rdX(0, 1))
    A.e(f"s_cmp_ge_u32 s32, {NSS - PD}")
    mm(1, 1, 0)
    A.e("v_add_u32 v6, s33, v6")
    A.e("v_add_u32 v8, s33, v8")
    A.e(f"s_cbranch_scc1 {L}_nodma")
    dma()
    A.label(f"{L}_nodma")
    A.e("s_add_u32 s32, s32, 1")
    A.e(f"s_cmp_lt_u32 s32, {NSS}")
    mm(1, 1, 1)
    A.e(f"s_cbranch_scc1 {L}")
    A.check_loop(st, L)
    A.e(f"s_branch {L}_done")
    A.label(f"{L}_tw")
    for k in range(PD - 3, 0, -1):
        s = NSS - 2 - k
        A.e(f"s_cmp_eq_u32 s32, {s}")
        A.e(f"s_cbranch_scc1 {L}_tw{k}")
    A.e("s_waitcnt vmcnt(0)")
    A.e(f"s_branch {L}_back")
    for k in range(PD - 3, 0, -1):
        A.label(f"{L}_tw{k}")
        A.e(f"s_waitcnt vmcnt({k*D})")
        A.e(f"s_branch {L}_back")
    A.label(f"{L}_done")
    A.fence()
    stamp(A, 3)
    A.e("s_and_b32 s3, s34, 3")
    A.e("s_lshl_b32 s3, s3, 14")
    A.e("s_add_u32 s3, s3, 65536")
    A.e("v_add_u32 v2, s3, v1")
    A.e("v_and_b32 v3, 31, v0")
    A.e("v_lshlrev_b32 v3, 12, v3")
    A.e("v_lshl_add_u32 v3, v13, 4, v3")
    A.e("s_cmp_eq_u32 s43, 0")
    A.e("s_nop 15")
    A.e("s_waitcnt lgkmcnt(0)")
    A.e("s_cbranch_scc0 K3_g1")
    hist = list(A.hist)
    for g in range(2):
        if g == 1:
            A.label("K3_g1")
            A.hist = list(hist)
        for ct in range(2):
            for rq in range(4):
                A.e(f"ds_write_b128 v2, {vr(ACC(1-g, ct)+4*rq,4)} offset:{(1-g)*8192 + (ct*4+rq)*1024}")
        A.e("s_waitcnt lgkmcnt(0)")
        A.e("s_barrier")
        for ct in range(2):
            for rq in range(4):
                A.e(f"ds_read_b128 {vr(80+(ct*4+rq)*4,4)}, v2 offset:{g*8192 + (ct*4+rq)*1024}")
        for ct in range(2):
            b = ACC(g, ct)
            for u in range(2):
                A.e(f"s_waitcnt lgkmcnt({6 - (ct*2+u)*2})")
                for i in range(8*u, 8*u + 8, 2):
                    A.e(f"v_pk_add_f32 {vr(b+i,2)}, {vr(b+i,2)}, {vr(80+ct*16+i,2)}")
                for i in range(4*u, 4*u + 4):
                    A.e(f"v_cvt_pk_bf16_f32 v{b+i}, v{b+2*i}, v{b+2*i+1}")
                A.e(f"v_permlane32_swap_b32 v{b+4*u}, v{b+4*u+2}")
                A.e(f"v_permlane32_swap_b32 v{b+4*u+1}, v{b+4*u+3}")
                A.e(f"buffer_store_dwordx4 {vr(b+4*u,4)}, v3, s[16:19], s47 offen offset:{ct*64+u*32}")
        if DBG:
            stamp(A, 4)
            A.e("s_waitcnt vmcnt(0)")
            stamp(A, 5)
            dbg_dump(A, 6)
        A.e("s_endpgm")
    A.label("K3_end")
    A.e("s_endpgm")
```

```python
import sys
from asmlib import *
from gen_k1 import *
NAME = "concat_heads__linear_kernel_hedgehog__grouped_kv_mqa__prompt"
def build(kernels=("k1",)):
    A = Asm()
    launches = []
    descs = []
    if "k1" in kernels:
        launches.append(f"; @launch kernel=k1_kernel grid=(256,1,1) block=(512,1,1) lds={K1_LDS}")
    try:
        import gen_k2, gen_k3
    except ImportError:
        gen_k2 = gen_k3 = None
    if "k2" in kernels:
        launches.append(f"; @launch kernel=k2_kernel grid=(256,1,1) block=(512,1,1) lds={gen_k2.K2_LDS}")
    if "k3" in kernels:
        launches.append(f"; @launch kernel=k3_kernel grid=(256,1,1) block=(512,1,1) lds={gen_k3.K3_LDS}")
    hdr = open("cdna_kernels/" + NAME + ".s.ref").read().split("; @launch")[0]
    A.raw(hdr.rstrip("\n"))
    for l in launches: A.raw(l)
    A.raw('.amdgcn_target "amdgcn-amd-amdhsa--gfx950"')
    if "k1" in kernels:
        gen_k1(A, "k1_kernel"); descs.append(kernel_desc("k1_kernel", K1_VGPR))
    if "k2" in kernels:
        gen_k2.gen_k2(A, "k2_kernel"); descs.append(kernel_desc("k2_kernel", gen_k2.K2_VGPR))
    if "k3" in kernels:
        gen_k3.gen_k3(A, "k3_kernel"); descs.append(kernel_desc("k3_kernel", gen_k3.K3_VGPR))
    A.raw('.section .rodata,"a"')
    return A.text() + "".join(descs)
if __name__ == "__main__":
    ks = sys.argv[1].split(",") if len(sys.argv) > 1 else ["k1", "k2", "k3"]
    out = sys.argv[2] if len(sys.argv) > 2 else "cdna_kernels/" + NAME + ".s"
    open(out, "w").write(build(ks))
    print("wrote", out)
```

```python
from asmlib import *
import struct

WS_QA = 0; WS_QB = 4 << 20; WS_KV = 8 << 20; WS_KVP = 9 << 20; WS_ZP = 13 << 20
WS_OA = 14 << 20; WS_OB = 18 << 20; WS_BYTES = 22 << 20
LOG2E = 1.4426950408889634
def f2u(x): return struct.unpack("<I", struct.pack("<f", x))[0]

K1_WSLOT = 3328
K1_SLOT = 8 * K1_WSLOT
K1_NS = 6
K1_LDS = K1_SLOT * K1_NS
K1_VGPR = 192

import os
DBG = int(os.environ.get("K1DBG", "0"))
NODMA = int(os.environ.get("NODMA", "0"))
NOMFMA = int(os.environ.get("NOMFMA", "0"))
NOLDS = int(os.environ.get("NOLDS", "0"))
def stamp(A, i):
    if DBG:
        A.e(f"s_memtime s[{70+2*i}:{71+2*i}]")
def dbg_dump(A, n):
    if not DBG: return
    L = A.newlabel("dbgskip")
    A.e("s_memrealtime s[86:87]")
    A.e("s_waitcnt lgkmcnt(0)")
    A.e("s_lshr_b32 s3, s2, 3")
    A.e(f"s_cmp_lg_u32 s3, {DBG-1}")
    A.e(f"s_cbranch_scc1 {L}")
    A.e("s_cmp_lg_u32 s34, 0")
    A.e(f"s_cbranch_scc1 {L}")
    A.e("s_load_dwordx2 s[88:89], s[0:1], 80")
    A.e("s_waitcnt lgkmcnt(0)")
    srd(A, 92, 88, 256)
    A.e("s_and_b32 s3, s2, 7")
    A.e("s_lshl_b32 s3, s3, 5")
    A.e("v_mov_b32 v1, 0")
    for i in range(1, n):
        A.e(f"s_sub_u32 s{70+2*i}, s{70+2*i}, s70")
        A.e(f"v_mov_b32 v2, s{70+2*i}")
        A.e(f"buffer_store_dword v2, v1, s[92:95], s3 offen offset:{4*i}")
    A.e("s_sub_u32 s86, s86, s84")
    A.e("v_mov_b32 v2, s86")
    A.e(f"buffer_store_dword v2, v1, s[92:95], s3 offen offset:28")
    A.label(L)

def gen_k1(A, name):
    kernel_header(A, name)
    Lend = "K1_end"
    A.e("s_cmp_ge_u32 s2, 256")
    A.e(f"s_cbranch_scc1 {Lend}")
    stamp(A, 0)
    if DBG: A.e("s_memrealtime s[84:85]")
    A.e("s_load_dwordx16 s[44:59], s[0:1], 0")
    A.e("s_load_dwordx2 s[60:61], s[0:1], 88")
    A.e("v_lshrrev_b32 v1, 6, v0")
    A.e("v_and_b32 v0, 63, v0")
    A.e("v_readfirstlane_b32 s34, v1")
    A.e("s_and_b32 s3, s2, 7")
    A.e("s_lshr_b32 s36, s2, 3")
    A.e("s_and_b32 s35, s3, 1")
    A.e("s_lshl_b32 s35, s35, 3")
    A.e("s_and_b32 s37, s36, 7")
    A.e("s_add_u32 s35, s35, s37")
    A.e("s_lshr_b32 s40, s3, 1")
    A.e("s_lshl_b32 s40, s40, 2")
    A.e("s_lshr_b32 s37, s36, 3")
    A.e("s_add_u32 s40, s40, s37")
    A.e("s_lshr_b32 s38, s34, 2")
    A.e("s_and_b32 s39, s34, 3")
    A.e("v_and_b32 v10, 15, v0")
    A.e("v_lshlrev_b32 v5, 6, v10")
    A.e("v_bfe_u32 v11, v0, 4, 1")
    A.e(f"v_mul_u32_u24 v11, {K1_WSLOT}, v11")
    A.e("v_add_u32 v5, v5, v11")
    A.e(f"s_mul_i32 s3, s38, {4*K1_WSLOT}")
    A.e("v_add_u32 v5, s3, v5")
    A.e("v_bfe_u32 v12, v0, 2, 2")
    A.e("v_lshrrev_b32 v13, 5, v0")
    A.e("v_xor_b32 v14, v13, v12")
    A.e("v_xor_b32 v15, 2, v14")
    A.e("v_lshl_add_u32 v6, v15, 4, v5")
    A.e("v_lshl_add_u32 v5, v14, 4, v5")
    A.e(f"v_mul_u32_u24 v7, {2*K1_WSLOT}, v13")
    A.e("v_lshl_add_u32 v7, v12, 6, v7")
    A.e("v_bfe_u32 v11, v0, 4, 1")
    A.e("v_lshl_add_u32 v7, v11, 5, v7")
    A.e("v_and_b32 v14, 3, v0")
    A.e("v_lshl_add_u32 v7, v14, 3, v7")
    A.e("s_lshl_b32 s3, s39, 8")
    A.e("s_add_u32 s3, s3, 1024")
    A.e("v_add_u32 v7, s3, v7")
    A.e("v_lshrrev_b32 v2, 2, v0")
    A.e("s_lshl_b32 s3, s35, 7")
    A.e("s_lshl_b32 s37, s34, 4")
    A.e("s_add_u32 s3, s3, s37")
    A.e("v_add_u32 v2, s3, v2")
    A.e("v_lshlrev_b32 v2, 11, v2")
    A.e("v_bfe_u32 v15, v0, 4, 2")
    A.e("v_xor_b32 v15, v15, v14")
    A.e("v_lshl_add_u32 v2, v15, 4, v2")
    A.e("v_lshrrev_b32 v3, 4, v0")
    A.e("v_lshlrev_b32 v3, 6, v3")
    A.e("v_lshl_add_u32 v3, v14, 4, v3")
    A.e("s_lshl_b32 s3, s34, 2")
    A.e("v_add_u32 v1, s3, v12")
    A.e(f"s_mul_i32 s31, s34, {K1_WSLOT}")
    A.e(f"s_add_u32 s41, s31, {K1_LDS}")
    ROT = os.environ.get("ROT", "")
    if ROT == "xcd":
        A.e("s_and_b32 s65, s2, 7"); A.e("s_lshl_b32 s65, s65, 2")
    elif ROT == "mt":
        A.e("s_and_b32 s65, s35, 7"); A.e("s_lshl_b32 s65, s65, 2")
    elif ROT == "nt":
        A.e("s_and_b32 s65, s40, 3"); A.e("s_lshl_b32 s65, s65, 3")
    elif ROT == "wg":
        A.e("s_lshr_b32 s65, s2, 3")
    elif ROT == "xcd2":
        A.e("s_and_b32 s65, s2, 7"); A.e("s_lshl_b32 s65, s65, 1")
    else:
        A.e("s_mov_b32 s65, 0")
    A.e("s_lshl_b32 s28, s65, 6")
    A.e("s_lshl_b32 s30, s65, 11")
    A.e("s_mov_b32 s32, 0")
    A.e("s_mov_b32 s43, 0")
    A.e(f"s_mov_b32 s64, {(-5*K1_SLOT) & 0xffffffff}")
    for r in range(16, 80):
        A.e(f"v_mov_b32 v{r}, 0")
    A.e("s_waitcnt lgkmcnt(0)")
    srd(A, 24, 60, WS_BYTES)
    A.e("s_cmp_lt_u32 s40, 4")
    A.e("s_cbranch_scc1 K1_T0")
    A.e("s_cmp_lt_u32 s40, 12")
    A.e("s_cbranch_scc1 K1_T1")
    A.e("s_cmp_lt_u32 s40, 14")
    A.e("s_cbranch_scc1 K1_T2")
    A.e("s_branch K1_T3")
    for T in range(4):
        A.label(f"K1_T{T}")
        A.fence()
        k1_type(A, T)
        A.e("s_endpgm")
    A.label(Lend)
    A.e("s_endpgm")

ACC = lambda rt, ct: 16 + (rt * 2 + ct) * 16

def k1_type(A, T):
    isB = T >= 2
    pitch = 2048 if isB else 6144
    wbytes = 1024 * pitch
    D = 4 if isB else 3
    xptr = 52 if isB else 44
    wptr = 54 if isB else 46
    if T == 0:
        A.e("s_lshl_b32 s42, s40, 9")
        A.e("s_add_u32 s37, s42, 256")
    elif T == 1:
        A.e("s_sub_u32 s3, s40, 4")
        A.e("s_lshl_b32 s3, s3, 8")
        A.e("s_add_u32 s42, s3, 2048")
        A.e("s_add_u32 s37, s3, 4096")
    else:
        A.e("s_sub_u32 s3, s40, 12")
        A.e("s_lshl_b32 s42, s3, 9")
        A.e("s_add_u32 s37, s42, 256")
    srd(A, 8, xptr, 2048 * 2048)
    for (d, cb, off) in ((12, 42, 1024), (16, 37, 2048)):
        A.e(f"s_add_u32 s{d}, s{wptr}, s{cb}")
        A.e(f"s_addc_u32 s{d+1}, s{wptr+1}, 0")
        A.e(f"s_sub_u32 s{d}, s{d}, {off}")
        A.e(f"s_subb_u32 s{d+1}, s{d+1}, 0")
        A.e(f"s_and_b32 s{d+1}, s{d+1}, 0xffff")
        A.e(f"s_sub_u32 s{d+2}, {wbytes + off}, s{cb}")
        A.e(f"s_mov_b32 s{d+3}, 0x00020000")
    A.e(f"s_mul_i32 s29, s65, {32*pitch}")
    A.e(f"v_mul_u32_u24 v1, {pitch}, v1")
    A.e("v_add_u32 v3, v3, v1")
    if isB:
        srd(A, 20, 56 if T == 2 else 58, 65536 + 3072, -3072)
        A.e("s_lshl_b32 s3, s34, 8")
        A.e("v_lshl_add_u32 v4, v0, 2, s3")
        A.e("v_lshrrev_b32 v8, 4, v0")
        A.e("v_xor_b32 v8, v8, v12")
        A.e("v_lshlrev_b32 v8, 4, v8")
        A.e("v_lshl_add_u32 v8, v10, 6, v8")
        A.e("v_add_u32 v8, s31, v8")
        A.e("v_lshrrev_b32 v9, 4, v0")
        A.e(f"v_mul_u32_u24 v9, {2*K1_WSLOT}, v9")
        A.e("v_lshl_add_u32 v9, v12, 6, v9")
        A.e("v_lshl_add_u32 v9, v14, 3, v9")
        A.e("s_and_b32 s3, s40, 1")
        A.e("s_lshl_b32 s3, s3, 5")
        A.e("s_add_u32 s3, s3, 3072")
        A.e("v_add_u32 v9, s3, v9")
        for r in range(120, 124):
            A.e(f"v_mov_b32 v{r}, 0")
    if T == 1:
        srd(A, 20, 48, 65536)
        A.e("s_sub_u32 s3, s40, 4")
        A.e("s_lshl_b32 s3, s3, 2")
        A.e("s_add_u32 s36, s3, s39")
        A.e("s_lshl_b32 s3, s36, 11")
        A.e("v_and_b32 v8, 31, v0")
        A.e("v_lshlrev_b32 v8, 1, v8")
        A.e("v_lshl_add_u32 v8, v13, 8, v8")
        for t in range(2):
            for j in range(8):
                d = 16 * t + 8 * (j >> 2) + (j & 3)
                A.e(f"buffer_load_ushort v{124 + t*8 + j}, v8, s[20:23], s3 offen offset:{d*64}")

    def dma():
        A.e("s_mov_b32 m0, s31")
        A.e(f"s_add_u32 s31, s31, {K1_SLOT}")
        A.e("buffer_load_dwordx4 v2, s[8:11], s28 offen lds")
        A.e("buffer_load_dwordx4 v3, s[12:15], s29 offen offset:1024 lds")
        A.e("buffer_load_dwordx4 v3, s[16:19], s29 offen offset:2048 lds")
        if isB:
            A.e("buffer_load_dword v4, s[20:23], s30 offen offset:3072 lds")
            A.e("s_add_u32 s30, s30, 2048")
            A.e("s_and_b32 s30, s30, 65535")
        A.e("s_add_u32 s28, s28, 64")
        A.e("s_and_b32 s28, s28, 2047")
        A.e(f"s_add_u32 s29, s29, {32*pitch}")
        A.e(f"s_cmp_eq_u32 s29, {1024*pitch}")
        A.e("s_cselect_b32 s29, 0, s29")
        A.e("s_cmp_ge_u32 s31, s41")
        A.e(f"s_cselect_b32 s3, {K1_LDS}, 0")
        A.e("s_sub_u32 s31, s31, s3")

    S = [dict(X=[80, 84], W=[88, 92]), dict(X=[96, 100], W=[104, 108])]
    def rdX(t, rt):
        return f"ds_read_b128 {vr(S[t]['X'][rt],4)}, v{5+t} offset:{rt*2*K1_WSLOT}"
    def rdW(t, ct, h):
        return f"ds_read_b64_tr_b16 {vr(S[t]['W'][ct]+2*h,2)}, v7 offset:{t*4*K1_WSLOT + h*K1_WSLOT + ct*1024}"
    def mm(t, rt, ct):
        x, w = S[t]['X'][rt], S[t]['W'][ct]
        if NOMFMA: return
        if os.environ.get("M16"):
            mfma16(A, ACC(rt, ct) + 8*t, w, x); mfma16(A, ACC(rt, ct) + 8*t + 4, x, w); return
        if T == 1 and ct == 1: mfma32(A, ACC(rt, ct), x, w)
        else: mfma32(A, ACC(rt, ct), w, x)

    for s in range(5):
        dma()
    stamp(A, 1)
    A.e(f"s_waitcnt vmcnt({4*D})")
    A.e("s_barrier")
    stamp(A, 2)
    for q in (rdX(0, 0), rdW(0, 0, 0), rdW(0, 0, 1), rdW(0, 1, 0), rdW(0, 1, 1), rdX(0, 1)):
        A.e(q)
    L = f"K1_T{T}_loop"
    A.raw(".p2align 6")
    A.label(L)
    st = A.mark()
    A.e("s_waitcnt lgkmcnt(0)")
    mm(0, 0, 0); A.e(rdX(1, 0)); A.e(rdW(1, 0, 0))
    mm(0, 0, 1); A.e(rdW(1, 0, 1)); A.e(rdW(1, 1, 0))
    mm(0, 1, 0); A.e(rdW(1, 1, 1)); A.e(rdX(1, 1))
    A.e("s_cmp_ge_u32 s32, 28")
    mm(0, 1, 1)
    if isB:
        A.e("ds_read_b128 v[112:115], v8")
        A.e("ds_read_b64_tr_b16 v[116:117], v9")
        A.e(f"ds_read_b64_tr_b16 v[118:119], v9 offset:{K1_WSLOT}")
    A.e(f"s_cbranch_scc1 {L}_tw")
    A.e(f"s_waitcnt vmcnt({3*D})")
    A.label(f"{L}_back")
    A.e("s_barrier")
    A.e("s_add_u32 s43, s43, 1")
    A.e(f"s_cmp_eq_u32 s43, {K1_NS}")
    A.e(f"s_cselect_b32 s33, s64, {K1_SLOT}")
    A.e("s_cselect_b32 s43, 0, s43")
    A.e(f"s_waitcnt lgkmcnt({3 if isB else 0})")
    mm(1, 0, 0)
    A.e("v_add_u32 v5, s33, v5")
    A.e("v_add_u32 v7, s33, v7")
    A.e(rdX(0, 0)); A.e(rdW(0, 0, 0))
    mm(1, 0, 1)
    A.e(rdW(0, 0, 1)); A.e(rdW(0, 1, 0)); A.e(rdW(0, 1, 1)); A.e(rdX(0, 1))
    A.e(f"s_cmp_ge_u32 s32, {0 if NODMA else 27}")
    mm(1, 1, 0)
    A.e("v_add_u32 v6, s33, v6")
    A.e(f"s_cbranch_scc1 {L}_nodma")
    dma()
    A.label(f"{L}_nodma")
    if isB:
        A.e("s_waitcnt lgkmcnt(6)")
        if T == 2: mfma16(A, 120, 116, 112)
        else: mfma16(A, 120, 112, 116)
        A.e("v_add_u32 v8, s33, v8")
        A.e("v_add_u32 v9, s33, v9")
    A.e("s_add_u32 s32, s32, 1")
    A.e("s_cmp_lt_u32 s32, 32")
    mm(1, 1, 1)
    A.e(f"s_cbranch_scc1 {L}")
    A.check_loop(st, L)
    A.e(f"s_branch {L}_done")
    A.label(f"{L}_tw")
    A.e("s_cmp_eq_u32 s32, 28")
    A.e(f"s_cbranch_scc1 {L}_tw2")
    A.e("s_cmp_eq_u32 s32, 29")
    A.e(f"s_cbranch_scc1 {L}_tw1")
    A.e("s_waitcnt vmcnt(0)")
    A.e(f"s_branch {L}_back")
    A.label(f"{L}_tw2")
    A.e(f"s_waitcnt vmcnt({2*D})")
    A.e(f"s_branch {L}_back")
    A.label(f"{L}_tw1")
    A.e(f"s_waitcnt vmcnt({D})")
    A.e(f"s_branch {L}_back")
    A.label(f"{L}_done")
    A.fence()
    stamp(A, 3)
    A.e("s_nop 15")
    A.e("s_waitcnt lgkmcnt(0)")
    if T == 1: k1_epi_kv(A)
    else: k1_epi_q(A, T)
    if DBG:
        stamp(A, 4)
        A.e("s_waitcnt vmcnt(0)")
        stamp(A, 5)
        dbg_dump(A, 6)

def pack16(A, base):
    for i in range(8):
        A.e(f"v_cvt_pk_bf16_f32 v{base+i}, v{base+2*i}, v{base+2*i+1}")

def k1_epi_q(A, T):
    isB = T >= 2
    if isB: A.e("s_sub_u32 s3, s40, 12")
    else: A.e("s_mov_b32 s3, s40")
    A.e("s_lshl_b32 s3, s3, 3")
    A.e("s_add_u32 s3, s3, s39")
    A.e("s_lshl_b32 s3, s3, 17")
    A.e("s_lshl_b32 s36, s35, 13")
    A.e("s_add_u32 s3, s3, s36")
    A.e("s_lshl_b32 s36, s38, 12")
    A.e("s_add_u32 s3, s3, s36")
    if isB: A.e(f"s_add_u32 s3, s3, {WS_QB}")
    A.e(f"s_add_u32 s36, s3, {4*131072}")
    A.e("v_lshlrev_b32 v1, 4, v0")
    for rt in range(2):
        for ct in range(2):
            b = ACC(rt, ct)
            pack16(A, b)
            for t in range(2):
                A.e(f"buffer_store_dwordx4 {vr(b+4*t,4)}, v1, s[24:27], s{36 if ct else 3} offen offset:{rt*2048+t*1024}")
    if isB:
        if T == 2:
            c = f2u(LOG2E / 32 ** 0.5)
            for r in range(120, 124):
                A.e(f"v_mul_f32 v{r}, {c:#x}, v{r}")
        A.e("v_cvt_pk_bf16_f32 v120, v120, v121")
        A.e("v_cvt_pk_bf16_f32 v121, v122, v123")
        A.e("v_bfe_u32 v2, v0, 4, 1")
        A.e("v_lshlrev_b32 v2, 9, v2")
        A.e("v_lshl_add_u32 v2, v10, 4, v2")
        A.e("v_lshrrev_b32 v3, 5, v0")
        A.e("v_lshl_add_u32 v2, v3, 3, v2")
        A.e("s_lshl_b32 s3, s35, 2")
        A.e("s_lshr_b32 s36, s34, 1")
        A.e("s_add_u32 s3, s3, s36")
        A.e("s_lshl_b32 s3, s3, 12")
        A.e(f"s_add_u32 s3, s3, {WS_KV + (2048 if T == 3 else 0)}")
        A.e("s_and_b32 s36, s40, 1")
        A.e("s_and_b32 s37, s34, 1")
        a, b_ = (36, 37) if T == 2 else (37, 36)
        A.e(f"s_lshl_b32 s{a}, s{a}, 10")
        A.e(f"s_lshl_b32 s{b_}, s{b_}, 8")
        A.e("s_add_u32 s3, s3, s36")
        A.e("s_add_u32 s3, s3, s37")
        A.e("buffer_store_dwordx2 v[120:121], v2, s[24:27], s3 offen")

def dual_softmax(A, P, U, t0):
    mx, mn, d, sp, sn, x, y = t0, t0 + 1, t0 + 2, t0 + 4, t0 + 6, t0 + 8, t0 + 9
    A.e(f"v_max3_f32 v{mx}, v{P}, v{P+1}, v{P+2}")
    A.e(f"v_min3_f32 v{mn}, v{P}, v{P+1}, v{P+2}")
    for i in range(3, 15, 2):
        A.e(f"v_max3_f32 v{mx}, v{mx}, v{P+i}, v{P+i+1}")
        A.e(f"v_min3_f32 v{mn}, v{mn}, v{P+i}, v{P+i+1}")
    A.e(f"v_max_f32 v{mx}, v{mx}, v{P+15}")
    A.e(f"v_min_f32 v{mn}, v{mn}, v{P+15}")
    A.e(f"v_mov_b32 v{x}, v{mx}")
    A.e(f"v_mov_b32 v{y}, v{mn}")
    A.e(f"v_permlane32_swap_b32 v{mx}, v{x}")
    A.e(f"v_permlane32_swap_b32 v{mn}, v{y}")
    A.e(f"v_max_f32 v{mx}, v{mx}, v{x}")
    A.e(f"v_min_f32 v{mn}, v{mn}, v{y}")
    A.e(f"v_sub_f32 v{d}, v{mx}, v{mn}")
    A.e(f"v_mul_f32 v{mx}, {f2u(-LOG2E):#x}, v{mx}")
    A.e(f"v_mul_f32 v{d}, s62, v{d}")
    for i in range(0, 16, 2):
        A.e(f"v_pk_fma_f32 {vr(P+i,2)}, {vr(P+i,2)}, s[62:63], {vr(mx,2)} op_sel_hi:[1,1,0]")
        A.e(f"v_pk_add_f32 {vr(U+i,2)}, {vr(P+i,2)}, {vr(d,2)} op_sel_hi:[1,0]")
    for i in range(0, 16, 2):
        A.e(f"v_exp_f32 v{P+i}, v{P+i}")
        A.e(f"v_exp_f32 v{P+i+1}, v{P+i+1}")
        A.e(f"v_exp_f32 v{U+i}, -v{U+i}")
        A.e(f"v_exp_f32 v{U+i+1}, -v{U+i+1}")
        if i == 2:
            A.e(f"v_pk_add_f32 {vr(sp,2)}, {vr(P,2)}, {vr(P+2,2)}")
            A.e(f"v_pk_add_f32 {vr(sn,2)}, {vr(U,2)}, {vr(U+2,2)}")
        elif i > 2:
            A.e(f"v_pk_add_f32 {vr(sp,2)}, {vr(sp,2)}, {vr(P+i,2)}")
            A.e(f"v_pk_add_f32 {vr(sn,2)}, {vr(sn,2)}, {vr(U+i,2)}")
    A.e(f"v_add_f32 v{sp}, v{sp}, v{sp+1}")
    A.e(f"v_add_f32 v{sn}, v{sn}, v{sn+1}")
    A.e(f"v_permlane32_swap_b32 v{sp}, v{sn}")
    A.e(f"v_add_f32 v{sp}, v{sp}, v{sn}")
    A.e(f"v_rcp_f32 v{sp}, v{sp}")
    A.e(f"v_mov_b32 v{sn}, v{sp}")
    A.e(f"v_permlane32_swap_b32 v{sp}, v{sn}")
    for i in range(0, 16, 2):
        A.e(f"v_pk_mul_f32 {vr(P+i,2)}, {vr(P+i,2)}, {vr(sp,2)} op_sel_hi:[1,0]")
        A.e(f"v_pk_mul_f32 {vr(U+i,2)}, {vr(U+i,2)}, {vr(sn,2)} op_sel_hi:[1,0]")
        A.e(f"v_cvt_pk_bf16_f32 v{P+i//2}, v{P+i}, v{P+i+1}")
        A.e(f"v_cvt_pk_bf16_f32 v{U+i//2}, v{U+i}, v{U+i+1}")

PHI_BASE = 2 * K1_SLOT
PHI_PITCH = 136
PHI_WAVE = 64 * PHI_PITCH
XB_BASE = PHI_BASE + 8 * PHI_WAVE

def k1_epi_kv(A):
    Pr = [124, 140]
    KV = [156, 172]
    U = 80
    A.e(f"s_mov_b32 s62, {f2u(LOG2E):#x}")
    A.e(f"s_mov_b32 s63, {f2u(LOG2E):#x}")
    for i in range(8):
        A.e(f"v_lshl_or_b32 v{112+i}, v{124+2*i+1}, 16, v{124+2*i}")
    for rt in range(2):
        pack16(A, ACC(rt, 0))
    for rt in range(2):
        mfma32(A, Pr[rt], 112, ACC(rt, 0), "0")
        mfma32(A, Pr[rt], 116, ACC(rt, 0) + 4)
    for rt in range(2):
        pack16(A, ACC(rt, 1))
    A.e(f"s_mul_i32 s3, s34, {PHI_WAVE}")
    A.e(f"s_add_u32 s3, s3, {PHI_BASE}")
    A.e("v_and_b32 v1, 31, v0")
    A.e(f"v_mul_u32_u24 v1, {PHI_PITCH}, v1")
    A.e("v_lshl_add_u32 v1, v13, 3, v1")
    A.e("v_add_u32 v1, s3, v1")
    A.e("v_lshl_add_u32 v2, v13, 2, v12")
    A.e(f"v_mul_u32_u24 v2, {PHI_PITCH}, v2")
    A.e("v_bfe_u32 v3, v0, 4, 1")
    A.e("v_lshl_add_u32 v2, v3, 5, v2")
    A.e("v_lshl_add_u32 v2, v14, 3, v2")
    A.e("v_add_u32 v2, s3, v2")
    for rt in range(2):
        dual_softmax(A, Pr[rt], U, 96)
        for q in range(4):
            A.e(f"ds_write_b64 v1, {vr(Pr[rt]+2*q,2)} offset:{rt*32*PHI_PITCH + q*16}")
            A.e(f"ds_write_b64 v1, {vr(U+2*q,2)} offset:{rt*32*PHI_PITCH + 64 + q*16}")
    A.e("s_waitcnt lgkmcnt(0)")
    F = lambda ft, rt, t: 80 + ((ft * 2 + rt) * 2 + t) * 4
    for ft in range(2):
        for rt in range(2):
            for t in range(2):
                off = (rt * 32 + 16 * t) * PHI_PITCH + ft * 64
                A.e(f"ds_read_b64_tr_b16 {vr(F(ft,rt,t),2)}, v2 offset:{off}")
                A.e(f"ds_read_b64_tr_b16 {vr(F(ft,rt,t)+2,2)}, v2 offset:{off + 8*PHI_PITCH}")
    A.e("s_mov_b32 s3, 0x3f803f80")
    A.e("v_mov_b32 v4, 0")
    A.e("v_mov_b32 v5, 0")
    n = 0
    for ft in range(2):
        for rt in range(2):
            for t in range(2):
                n += 1
                A.e(f"s_waitcnt lgkmcnt({16 - 2*n})")
                mfma32(A, KV[ft], F(ft, rt, t), ACC(rt, 1) + 4 * t, "0" if (rt == 0 and t == 0) else None)
                for j in range(4):
                    A.e(f"v_dot2_f32_bf16 v{4+ft}, v{F(ft,rt,t)+j}, s3, v{4+ft}")
    A.e("v_permlane32_swap_b32 v4, v5")
    A.e("v_add_f32 v4, v4, v5")
    A.e("s_lshl_b32 s3, s36, 5")
    A.e("s_lshl_b32 s37, s35, 1")
    A.e("s_add_u32 s3, s3, s37")
    A.e("s_add_u32 s3, s3, s38")
    A.e("s_lshl_b32 s3, s3, 8")
    A.e(f"s_add_u32 s3, s3, {WS_ZP}")
    A.e("v_lshlrev_b32 v6, 2, v0")
    A.e("buffer_store_dword v4, v6, s[24:27], s3 offen")
    A.e("v_lshlrev_b32 v1, 4, v0")
    A.e("s_lshl_b32 s3, s39, 13")
    A.e(f"s_add_u32 s3, s3, {XB_BASE}")
    A.e("v_add_u32 v2, s3, v1")
    A.e("s_lshl_b32 s3, s36, 4")
    A.e("s_add_u32 s3, s3, s35")
    A.e("s_lshl_b32 s3, s3, 1")
    A.e("s_add_u32 s3, s3, s38")
    A.e("s_lshl_b32 s3, s3, 12")
    A.e(f"s_add_u32 s3, s3, {WS_KVP}")
    A.e("s_cmp_eq_u32 s38, 0")
    A.e("s_nop 7")
    A.e("s_cbranch_scc0 K1_kv_wm1")
    hist = list(A.hist)
    for wm in range(2):
        if wm == 1:
            A.label("K1_kv_wm1")
            A.hist = list(hist)
        keep, send = KV[wm], KV[1 - wm]
        for rq in range(4):
            A.e(f"ds_write_b128 v2, {vr(send+4*rq,4)} offset:{(1-wm)*4096 + rq*1024}")
        A.e("s_waitcnt lgkmcnt(0)")
        A.e("s_barrier")
        for rq in range(4):
            A.e(f"ds_read_b128 {vr(80+4*rq,4)}, v2 offset:{wm*4096 + rq*1024}")
        for rq in range(4):
            A.e(f"s_waitcnt lgkmcnt({3-rq})")
            A.e(f"v_pk_add_f32 {vr(keep+4*rq,2)}, {vr(keep+4*rq,2)}, {vr(80+4*rq,2)}")
            A.e(f"v_pk_add_f32 {vr(keep+4*rq+2,2)}, {vr(keep+4*rq+2,2)}, {vr(80+4*rq+2,2)}")
            A.e(f"buffer_store_dwordx4 {vr(keep+4*rq,4)}, v1, s[24:27], s3 offen offset:{rq*1024}")
        if wm == 0:
            if DBG:
                stamp(A, 4)
                A.e("s_waitcnt vmcnt(0)")
                stamp(A, 5)
                dbg_dump(A, 6)
            A.e("s_endpgm")
```

```python
from asmlib import *
import struct

WS_EQ = 0; WS_QB = 8 << 20; WS_KV = 12 << 20; WS_KVP = 13 << 20; WS_ZP = 17 << 20
WS_OA = 18 << 20; WS_OB = 22 << 20; WS_BYTES = 26 << 20
SAFE = 60.0
LOG2E = 1.4426950408889634
def f2u(x): return struct.unpack("<I", struct.pack("<f", x))[0]

K1_WSLOT = 3328
K1_SLOT = 8 * K1_WSLOT
K1_NS = 6
K1_LDS = K1_SLOT * K1_NS
K1_VGPR = 192

import os
DBG = int(os.environ.get("K1DBG", "0"))
NODMA = int(os.environ.get("NODMA", "0"))
NOMFMA = int(os.environ.get("NOMFMA", "0"))
NOLDS = int(os.environ.get("NOLDS", "0"))
def stamp(A, i):
    if DBG:
        A.e(f"s_memtime s[{70+2*i}:{71+2*i}]")
def dbg_dump(A, n):
    if not DBG: return
    L = A.newlabel("dbgskip")
    A.e("s_memrealtime s[86:87]")
    A.e("s_waitcnt lgkmcnt(0)")
    A.e("s_lshr_b32 s3, s2, 3")
    A.e(f"s_cmp_lg_u32 s3, {DBG-1}")
    A.e(f"s_cbranch_scc1 {L}")
    A.e("s_cmp_lg_u32 s34, 0")
    A.e(f"s_cbranch_scc1 {L}")
    A.e("s_load_dwordx2 s[88:89], s[0:1], 80")
    A.e("s_waitcnt lgkmcnt(0)")
    srd(A, 92, 88, 256)
    A.e("s_and_b32 s3, s2, 7")
    A.e("s_lshl_b32 s3, s3, 5")
    A.e("v_mov_b32 v1, 0")
    for i in range(1, n):
        A.e(f"s_sub_u32 s{70+2*i}, s{70+2*i}, s70")
        A.e(f"v_mov_b32 v2, s{70+2*i}")
        A.e(f"buffer_store_dword v2, v1, s[92:95], s3 offen offset:{4*i}")
    A.e("s_sub_u32 s86, s86, s84")
    A.e("v_mov_b32 v2, s86")
    A.e(f"buffer_store_dword v2, v1, s[92:95], s3 offen offset:28")
    A.label(L)

def gen_k1(A, name):
    kernel_header(A, name)
    Lend = "K1_end"
    A.e("s_cmp_ge_u32 s2, 256")
    A.e(f"s_cbranch_scc1 {Lend}")
    stamp(A, 0)
    if DBG: A.e("s_memrealtime s[84:85]")
    A.e("s_load_dwordx16 s[44:59], s[0:1], 0")
    A.e("s_load_dwordx2 s[60:61], s[0:1], 88")
    A.e("v_lshrrev_b32 v1, 6, v0")
    A.e("v_and_b32 v0, 63, v0")
    A.e("v_readfirstlane_b32 s34, v1")
    A.e("s_and_b32 s3, s2, 7")
    A.e("s_lshr_b32 s36, s2, 3")
    A.e("s_and_b32 s35, s3, 1")
    A.e("s_lshl_b32 s35, s35, 3")
    A.e("s_and_b32 s37, s36, 7")
    A.e("s_add_u32 s35, s35, s37")
    A.e("s_lshr_b32 s40, s3, 1")
    A.e("s_lshl_b32 s40, s40, 2")
    A.e("s_lshr_b32 s37, s36, 3")
    A.e("s_add_u32 s40, s40, s37")
    A.e("s_lshr_b32 s38, s34, 2")
    A.e("s_and_b32 s39, s34, 3")
    A.e("v_and_b32 v10, 15, v0")
    A.e("v_lshlrev_b32 v5, 6, v10")
    A.e("v_bfe_u32 v11, v0, 4, 1")
    A.e(f"v_mul_u32_u24 v11, {K1_WSLOT}, v11")
    A.e("v_add_u32 v5, v5, v11")
    A.e(f"s_mul_i32 s3, s38, {4*K1_WSLOT}")
    A.e("v_add_u32 v5, s3, v5")
    A.e("v_bfe_u32 v12, v0, 2, 2")
    A.e("v_lshrrev_b32 v13, 5, v0")
    A.e("v_xor_b32 v14, v13, v12")
    A.e("v_xor_b32 v15, 2, v14")
    A.e("v_lshl_add_u32 v6, v15, 4, v5")
    A.e("v_lshl_add_u32 v5, v14, 4, v5")
    A.e(f"v_mul_u32_u24 v7, {2*K1_WSLOT}, v13")
    A.e("v_lshl_add_u32 v7, v12, 6, v7")
    A.e("v_bfe_u32 v11, v0, 4, 1")
    A.e("v_lshl_add_u32 v7, v11, 5, v7")
    A.e("v_and_b32 v14, 3, v0")
    A.e("v_lshl_add_u32 v7, v14, 3, v7")
    A.e("s_lshl_b32 s3, s39, 8")
    A.e("s_add_u32 s3, s3, 1024")
    A.e("v_add_u32 v7, s3, v7")
    A.e("v_lshrrev_b32 v2, 2, v0")
    A.e("s_lshl_b32 s3, s35, 7")
    A.e("s_lshl_b32 s37, s34, 4")
    A.e("s_add_u32 s3, s3, s37")
    A.e("v_add_u32 v2, s3, v2")
    A.e("v_lshlrev_b32 v2, 11, v2")
    A.e("v_bfe_u32 v15, v0, 4, 2")
    A.e("v_xor_b32 v15, v15, v14")
    A.e("v_lshl_add_u32 v2, v15, 4, v2")
    A.e("v_lshrrev_b32 v3, 4, v0")
    A.e("v_lshlrev_b32 v3, 6, v3")
    A.e("v_lshl_add_u32 v3, v14, 4, v3")
    A.e("s_lshl_b32 s3, s34, 2")
    A.e("v_add_u32 v1, s3, v12")
    A.e(f"s_mul_i32 s31, s34, {K1_WSLOT}")
    A.e(f"s_add_u32 s41, s31, {K1_LDS}")
    ROT = os.environ.get("ROT", "")
    if ROT == "xcd":
        A.e("s_and_b32 s65, s2, 7"); A.e("s_lshl_b32 s65, s65, 2")
    elif ROT == "mt":
        A.e("s_and_b32 s65, s35, 7"); A.e("s_lshl_b32 s65, s65, 2")
    elif ROT == "nt":
        A.e("s_and_b32 s65, s40, 3"); A.e("s_lshl_b32 s65, s65, 3")
    elif ROT == "wg":
        A.e("s_lshr_b32 s65, s2, 3")
    elif ROT == "xcd2":
        A.e("s_and_b32 s65, s2, 7"); A.e("s_lshl_b32 s65, s65, 1")
    else:
        A.e("s_mov_b32 s65, 0")
    A.e("s_lshl_b32 s28, s65, 6")
    A.e("s_lshl_b32 s30, s65, 11")
    A.e("s_mov_b32 s32, 0")
    A.e("s_mov_b32 s43, 0")
    A.e(f"s_mov_b32 s64, {(-5*K1_SLOT) & 0xffffffff}")
    for r in range(16, 80):
        A.e(f"v_mov_b32 v{r}, 0")
    A.e("s_waitcnt lgkmcnt(0)")
    srd(A, 24, 60, WS_BYTES)
    A.e("s_cmp_lt_u32 s40, 4")
    A.e("s_cbranch_scc1 K1_T0")
    A.e("s_cmp_lt_u32 s40, 12")
    A.e("s_cbranch_scc1 K1_T1")
    A.e("s_cmp_lt_u32 s40, 14")
    A.e("s_cbranch_scc1 K1_T2")
    A.e("s_branch K1_T3")
    for T in range(4):
        A.label(f"K1_T{T}")
        A.fence()
        k1_type(A, T)
        A.e("s_endpgm")
    A.label(Lend)
    A.e("s_endpgm")

ACC = lambda rt, ct: 16 + (rt * 2 + ct) * 16
WPK = 156

def k1_type(A, T):
    isB = T >= 2
    pitch = 2048 if isB else 6144
    wbytes = 1024 * pitch
    D = 4 if isB else 3
    xptr = 52 if isB else 44
    wptr = 54 if isB else 46
    if T == 0:
        A.e("s_lshl_b32 s42, s40, 9")
        A.e("s_add_u32 s37, s42, 256")
    elif T == 1:
        A.e("s_sub_u32 s3, s40, 4")
        A.e("s_lshl_b32 s3, s3, 8")
        A.e("s_add_u32 s42, s3, 2048")
        A.e("s_add_u32 s37, s3, 4096")
    else:
        A.e("s_sub_u32 s3, s40, 12")
        A.e("s_lshl_b32 s42, s3, 9")
        A.e("s_add_u32 s37, s42, 256")
    srd(A, 8, xptr, 2048 * 2048)
    for (d, cb, off) in ((12, 42, 1024), (16, 37, 2048)):
        A.e(f"s_add_u32 s{d}, s{wptr}, s{cb}")
        A.e(f"s_addc_u32 s{d+1}, s{wptr+1}, 0")
        A.e(f"s_sub_u32 s{d}, s{d}, {off}")
        A.e(f"s_subb_u32 s{d+1}, s{d+1}, 0")
        A.e(f"s_and_b32 s{d+1}, s{d+1}, 0xffff")
        A.e(f"s_sub_u32 s{d+2}, {wbytes + off}, s{cb}")
        A.e(f"s_mov_b32 s{d+3}, 0x00020000")
    A.e(f"s_mul_i32 s29, s65, {32*pitch}")
    A.e(f"v_mul_u32_u24 v1, {pitch}, v1")
    A.e("v_add_u32 v3, v3, v1")
    if isB:
        srd(A, 20, 56 if T == 2 else 58, 65536 + 3072, -3072)
        A.e("s_lshl_b32 s3, s34, 8")
        A.e("v_lshl_add_u32 v4, v0, 2, s3")
        A.e("v_lshrrev_b32 v8, 4, v0")
        A.e("v_xor_b32 v8, v8, v12")
        A.e("v_lshlrev_b32 v8, 4, v8")
        A.e("v_lshl_add_u32 v8, v10, 6, v8")
        A.e("v_add_u32 v8, s31, v8")
        A.e("v_lshrrev_b32 v9, 4, v0")
        A.e(f"v_mul_u32_u24 v9, {2*K1_WSLOT}, v9")
        A.e("v_lshl_add_u32 v9, v12, 6, v9")
        A.e("v_lshl_add_u32 v9, v14, 3, v9")
        A.e("s_and_b32 s3, s40, 1")
        A.e("s_lshl_b32 s3, s3, 5")
        A.e("s_add_u32 s3, s3, 3072")
        A.e("v_add_u32 v9, s3, v9")
        for r in range(120, 124):
            A.e(f"v_mov_b32 v{r}, 0")
    if T <= 1:
        srd(A, 20, 48, 65536)
        if T == 1:
            A.e("s_sub_u32 s3, s40, 4")
            A.e("s_lshl_b32 s3, s3, 2")
            A.e("s_add_u32 s36, s3, s39")
        else:
            A.e("s_lshl_b32 s3, s40, 3")
            A.e("s_add_u32 s36, s3, s39")
        A.e("s_lshl_b32 s3, s36, 11")
        A.e("v_and_b32 v8, 31, v0")
        A.e("v_lshlrev_b32 v8, 1, v8")
        A.e("v_lshl_add_u32 v8, v13, 8, v8")
        for ct in range(2 if T == 0 else 1):
            if ct: A.e("s_add_u32 s3, s3, 8192")
            for t in range(2):
                for j in range(8):
                    d = 16 * t + 8 * (j >> 2) + (j & 3)
                    A.e(f"buffer_load_ushort v{124 + ct*16 + t*8 + j}, v8, s[20:23], s3 offen offset:{d*64}")

    def dma():
        A.e("s_mov_b32 m0, s31")
        A.e(f"s_add_u32 s31, s31, {K1_SLOT}")
        A.e("buffer_load_dwordx4 v2, s[8:11], s28 offen lds")
        A.e("buffer_load_dwordx4 v3, s[12:15], s29 offen offset:1024 lds")
        A.e("buffer_load_dwordx4 v3, s[16:19], s29 offen offset:2048 lds")
        if isB:
            A.e("buffer_load_dword v4, s[20:23], s30 offen offset:3072 lds")
            A.e("s_add_u32 s30, s30, 2048")
            A.e("s_and_b32 s30, s30, 65535")
        A.e("s_add_u32 s28, s28, 64")
        A.e("s_and_b32 s28, s28, 2047")
        A.e(f"s_add_u32 s29, s29, {32*pitch}")
        A.e(f"s_cmp_eq_u32 s29, {1024*pitch}")
        A.e("s_cselect_b32 s29, 0, s29")
        A.e("s_cmp_ge_u32 s31, s41")
        A.e(f"s_cselect_b32 s3, {K1_LDS}, 0")
        A.e("s_sub_u32 s31, s31, s3")

    S = [dict(X=[80, 84], W=[88, 92]), dict(X=[96, 100], W=[104, 108])]
    def rdX(t, rt):
        return f"ds_read_b128 {vr(S[t]['X'][rt],4)}, v{5+t} offset:{rt*2*K1_WSLOT}"
    def rdW(t, ct, h):
        return f"ds_read_b64_tr_b16 {vr(S[t]['W'][ct]+2*h,2)}, v7 offset:{t*4*K1_WSLOT + h*K1_WSLOT + ct*1024}"
    def mm(t, rt, ct):
        x, w = S[t]['X'][rt], S[t]['W'][ct]
        if NOMFMA: return
        if os.environ.get("M16"):
            mfma16(A, ACC(rt, ct) + 8*t, w, x); mfma16(A, ACC(rt, ct) + 8*t + 4, x, w); return
        if T == 1 and ct == 1: mfma32(A, ACC(rt, ct), x, w)
        else: mfma32(A, ACC(rt, ct), w, x)

    for s in range(5):
        dma()
    stamp(A, 1)
    if T <= 1:
        A.e(f"s_mov_b32 s62, {f2u(LOG2E):#x}")
        A.e(f"s_mov_b32 s63, {f2u(LOG2E):#x}")
        A.e(f"s_waitcnt vmcnt({5*D})")
        n = 32 if T == 0 else 16
        for i in range(n):
            A.e(f"v_lshlrev_b32 v{124+i}, 16, v{124+i}")
        for i in range(0, n, 2):
            A.e(f"v_pk_mul_f32 {vr(124+i,2)}, {vr(124+i,2)}, s[62:63]")
        for i in range(0, n, 2):
            A.e(f"v_cvt_pk_bf16_f32 v{WPK+i//2}, v{124+i}, v{124+i+1}")
    A.e(f"s_waitcnt vmcnt({4*D})")
    A.e("s_barrier")
    stamp(A, 2)
    for q in (rdX(0, 0), rdW(0, 0, 0), rdW(0, 0, 1), rdW(0, 1, 0), rdW(0, 1, 1), rdX(0, 1)):
        A.e(q)
    L = f"K1_T{T}_loop"
    A.raw(".p2align 6")
    A.label(L)
    st = A.mark()
    A.e("s_waitcnt lgkmcnt(0)")
    mm(0, 0, 0); A.e(rdX(1, 0)); A.e(rdW(1, 0, 0))
    mm(0, 0, 1); A.e(rdW(1, 0, 1)); A.e(rdW(1, 1, 0))
    mm(0, 1, 0); A.e(rdW(1, 1, 1)); A.e(rdX(1, 1))
    A.e("s_cmp_ge_u32 s32, 28")
    mm(0, 1, 1)
    if isB:
        A.e("ds_read_b128 v[112:115], v8")
        A.e("ds_read_b64_tr_b16 v[116:117], v9")
        A.e(f"ds_read_b64_tr_b16 v[118:119], v9 offset:{K1_WSLOT}")
    A.e(f"s_cbranch_scc1 {L}_tw")
    A.e(f"s_waitcnt vmcnt({3*D})")
    A.label(f"{L}_back")
    A.e("s_barrier")
    A.e("s_add_u32 s43, s43, 1")
    A.e(f"s_cmp_eq_u32 s43, {K1_NS}")
    A.e(f"s_cselect_b32 s33, s64, {K1_SLOT}")
    A.e("s_cselect_b32 s43, 0, s43")
    A.e(f"s_waitcnt lgkmcnt({3 if isB else 0})")
    mm(1, 0, 0)
    A.e("v_add_u32 v5, s33, v5")
    A.e("v_add_u32 v7, s33, v7")
    A.e(rdX(0, 0)); A.e(rdW(0, 0, 0))
    mm(1, 0, 1)
    A.e(rdW(0, 0, 1)); A.e(rdW(0, 1, 0)); A.e(rdW(0, 1, 1)); A.e(rdX(0, 1))
    A.e(f"s_cmp_ge_u32 s32, {0 if NODMA else 27}")
    mm(1, 1, 0)
    A.e("v_add_u32 v6, s33, v6")
    A.e(f"s_cbranch_scc1 {L}_nodma")
    dma()
    A.label(f"{L}_nodma")
    if isB:
        A.e("s_waitcnt lgkmcnt(6)")
        if T == 2: mfma16(A, 120, 116, 112)
        else: mfma16(A, 120, 112, 116)
        A.e("v_add_u32 v8, s33, v8")
        A.e("v_add_u32 v9, s33, v9")
    A.e("s_add_u32 s32, s32, 1")
    A.e("s_cmp_lt_u32 s32, 32")
    mm(1, 1, 1)
    A.e(f"s_cbranch_scc1 {L}")
    A.check_loop(st, L)
    A.e(f"s_branch {L}_done")
    A.label(f"{L}_tw")
    A.e("s_cmp_eq_u32 s32, 28")
    A.e(f"s_cbranch_scc1 {L}_tw2")
    A.e("s_cmp_eq_u32 s32, 29")
    A.e(f"s_cbranch_scc1 {L}_tw1")
    A.e("s_waitcnt vmcnt(0)")
    A.e(f"s_branch {L}_back")
    A.label(f"{L}_tw2")
    A.e(f"s_waitcnt vmcnt({2*D})")
    A.e(f"s_branch {L}_back")
    A.label(f"{L}_tw1")
    A.e(f"s_waitcnt vmcnt({D})")
    A.e(f"s_branch {L}_back")
    A.label(f"{L}_done")
    A.fence()
    stamp(A, 3)
    A.e("s_nop 15")
    A.e("s_waitcnt lgkmcnt(0)")
    if T == 1: k1_epi_kv(A)
    elif T == 0: k1_epi_eq(A)
    else: k1_epi_q(A, T)
    if DBG:
        stamp(A, 4)
        A.e("s_waitcnt vmcnt(0)")
        stamp(A, 5)
        dbg_dump(A, 6)

def pack16(A, base):
    for i in range(8):
        A.e(f"v_cvt_pk_bf16_f32 v{base+i}, v{base+2*i}, v{base+2*i+1}")

def k1_epi_q(A, T):
    isB = T >= 2
    if isB: A.e("s_sub_u32 s3, s40, 12")
    else: A.e("s_mov_b32 s3, s40")
    A.e("s_lshl_b32 s3, s3, 3")
    A.e("s_add_u32 s3, s3, s39")
    A.e("s_lshl_b32 s3, s3, 17")
    A.e("s_lshl_b32 s36, s35, 13")
    A.e("s_add_u32 s3, s3, s36")
    A.e("s_lshl_b32 s36, s38, 12")
    A.e("s_add_u32 s3, s3, s36")
    if isB: A.e(f"s_add_u32 s3, s3, {WS_QB}")
    A.e(f"s_add_u32 s36, s3, {4*131072}")
    A.e("v_lshlrev_b32 v1, 4, v0")
    for rt in range(2):
        for ct in range(2):
            b = ACC(rt, ct)
            pack16(A, b)
            for t in range(2):
                A.e(f"buffer_store_dwordx4 {vr(b+4*t,4)}, v1, s[24:27], s{36 if ct else 3} offen offset:{rt*2048+t*1024}")
    if isB:
        if T == 2:
            c = f2u(LOG2E / 32 ** 0.5)
            for r in range(120, 124):
                A.e(f"v_mul_f32 v{r}, {c:#x}, v{r}")
        A.e("v_cvt_pk_bf16_f32 v120, v120, v121")
        A.e("v_cvt_pk_bf16_f32 v121, v122, v123")
        A.e("v_bfe_u32 v2, v0, 4, 1")
        A.e("v_lshlrev_b32 v2, 9, v2")
        A.e("v_lshl_add_u32 v2, v10, 4, v2")
        A.e("v_lshrrev_b32 v3, 5, v0")
        A.e("v_lshl_add_u32 v2, v3, 3, v2")
        A.e("s_lshl_b32 s3, s35, 2")
        A.e("s_lshr_b32 s36, s34, 1")
        A.e("s_add_u32 s3, s3, s36")
        A.e("s_lshl_b32 s3, s3, 12")
        A.e(f"s_add_u32 s3, s3, {WS_KV + (2048 if T == 3 else 0)}")
        A.e("s_and_b32 s36, s40, 1")
        A.e("s_and_b32 s37, s34, 1")
        a, b_ = (36, 37) if T == 2 else (37, 36)
        A.e(f"s_lshl_b32 s{a}, s{a}, 10")
        A.e(f"s_lshl_b32 s{b_}, s{b_}, 8")
        A.e("s_add_u32 s3, s3, s36")
        A.e("s_add_u32 s3, s3, s37")
        A.e("buffer_store_dwordx2 v[120:121], v2, s[24:27], s3 offen")


def absmax_check(A, Ps, m, slow):
    regs = [p + i for p in Ps for i in range(16)]
    A.e(f"v_max3_f32 v{m}, |v{regs[0]}|, |v{regs[1]}|, |v{regs[2]}|")
    rest = regs[3:]
    while len(rest) >= 2:
        A.e(f"v_max3_f32 v{m}, v{m}, |v{rest[0]}|, |v{rest[1]}|")
        rest = rest[2:]
    if rest: A.e(f"v_max_f32 v{m}, v{m}, |v{rest[0]}|")
    A.e(f"v_cmp_nle_f32 vcc, v{m}, v{m+1}")
    A.e("s_nop 3")
    A.e("s_cmp_lg_u64 vcc, 0")
    A.e(f"s_cbranch_scc1 {slow}")

def true_shift(A, P, U, t0):
    mx, mn, x, y = t0, t0 + 2, t0 + 4, t0 + 5
    A.e(f"v_max3_f32 v{mx}, v{P}, v{P+1}, v{P+2}")
    A.e(f"v_min3_f32 v{mn}, v{P}, v{P+1}, v{P+2}")
    for i in range(3, 15, 2):
        A.e(f"v_max3_f32 v{mx}, v{mx}, v{P+i}, v{P+i+1}")
        A.e(f"v_min3_f32 v{mn}, v{mn}, v{P+i}, v{P+i+1}")
    A.e(f"v_max_f32 v{mx}, v{mx}, v{P+15}")
    A.e(f"v_min_f32 v{mn}, v{mn}, v{P+15}")
    A.e(f"v_mov_b32 v{x}, v{mx}")
    A.e(f"v_mov_b32 v{y}, v{mn}")
    A.e(f"v_permlane32_swap_b32 v{mx}, v{x}")
    A.e(f"v_permlane32_swap_b32 v{mn}, v{y}")
    A.e(f"v_max_f32 v{mx}, v{mx}, v{x}")
    A.e(f"v_min_f32 v{mn}, v{mn}, v{y}")
    for i in range(16):
        A.e(f"v_sub_f32 v{U+i}, v{P+i}, v{mn}")
        A.e(f"v_sub_f32 v{P+i}, v{P+i}, v{mx}")

def k1_epi_eq(A):
    units = [(rt, ct) for ct in range(2) for rt in range(2)]
    P = {u: 80 + 16 * i for i, u in enumerate(units)}
    U = 172
    A.e(f"v_mov_b32 v9, {f2u(SAFE):#x}")
    A.e("s_lshl_b32 s3, s36, 18")
    A.e("s_lshl_b32 s37, s35, 14")
    A.e("s_add_u32 s3, s3, s37")
    A.e("s_lshl_b32 s37, s38, 13")
    A.e("s_add_u32 s3, s3, s37")
    A.e(f"s_add_u32 s37, s3, {4 << 18}")
    A.e("v_lshlrev_b32 v1, 4, v0")
    A.e("v_add_u32 v2, 4096, v1")
    for u in units:
        rt, ct = u
        pack16(A, ACC(rt, ct))
        mfma32(A, P[u], WPK + 8 * ct, ACC(rt, ct), "0")
        mfma32(A, P[u], WPK + 8 * ct + 4, ACC(rt, ct) + 4)
    absmax_check(A, [P[u] for u in units], 8, "K1_eq_slow")
    def tail(u, src):
        rt, ct = u
        p = P[u]
        for half in range(2):
            for i in range(8 * half, 8 * half + 8):
                A.e(f"v_exp_f32 v{U+i}, -v{src+i}")
            for i in range(8 * half, 8 * half + 8):
                A.e(f"v_exp_f32 v{p+i}, v{p+i}")
            o = ACC(rt, ct) + 8 * half
            for i in range(4):
                A.e(f"v_cvt_pk_bf16_f32 v{o+4+i}, v{U+8*half+2*i}, v{U+8*half+2*i+1}")
            for i in range(4):
                A.e(f"v_cvt_pk_bf16_f32 v{o+i}, v{p+8*half+2*i}, v{p+8*half+2*i+1}")
            A.e(f"buffer_store_dwordx4 {vr(o+4,4)}, v{1+rt}, s[24:27], s{37 if ct else 3} offen offset:{2048 + half*1024}")
            A.e(f"buffer_store_dwordx4 {vr(o,4)}, v{1+rt}, s[24:27], s{37 if ct else 3} offen offset:{half*1024}")
    for u in units: tail(u, P[u])
    if DBG:
        stamp(A, 4)
        A.e("s_waitcnt vmcnt(0)")
        stamp(A, 5)
        dbg_dump(A, 6)
    A.e("s_endpgm")
    A.label("K1_eq_slow")
    A.fence()
    for u in units:
        true_shift(A, P[u], U, 2 + 8)
        tail_slow = tail
        tail(u, U)

PHI_BASE = 2 * K1_SLOT
PHI_PITCH = 136
PHI_WAVE = 64 * PHI_PITCH
XB_BASE = PHI_BASE + 8 * PHI_WAVE

def k1_epi_kv(A):
    Pr = [124, 140]
    Ur = [80, 96]
    KV = [156, 172]
    ZS = [112, 116]
    SEL = 120
    A.e(f"v_mov_b32 v9, {f2u(SAFE):#x}")
    for rt in range(2):
        pack16(A, ACC(rt, 0))
        mfma32(A, Pr[rt], WPK, ACC(rt, 0), "0")
        mfma32(A, Pr[rt], WPK + 4, ACC(rt, 0) + 4)
    for rt in range(2):
        pack16(A, ACC(rt, 1))
    A.e(f"s_mul_i32 s3, s34, {PHI_WAVE}")
    A.e(f"s_add_u32 s3, s3, {PHI_BASE}")
    A.e("v_and_b32 v1, 31, v0")
    A.e(f"v_mul_u32_u24 v1, {PHI_PITCH}, v1")
    A.e("v_lshl_add_u32 v1, v13, 3, v1")
    A.e("v_add_u32 v1, s3, v1")
    A.e("v_lshl_add_u32 v2, v13, 2, v12")
    A.e(f"v_mul_u32_u24 v2, {PHI_PITCH}, v2")
    A.e("v_bfe_u32 v3, v0, 4, 1")
    A.e("v_lshl_add_u32 v2, v3, 5, v2")
    A.e("v_lshl_add_u32 v2, v14, 3, v2")
    A.e("v_add_u32 v2, s3, v2")
    A.e("v_lshrrev_b32 v3, 2, v0")
    A.e("v_xor_b32 v3, v3, v0")
    A.e("v_and_b32 v3, 4, v3")
    A.e("v_or_b32 v3, v3, v14")
    A.e("v_cmp_eq_u32 vcc, 0, v3")
    A.e("v_mov_b32 v4, 0x3f803f80")
    A.e("v_mov_b32 v5, 0")
    for i in range(4):
        A.e(f"v_cndmask_b32 v{SEL+i}, v5, v4, vcc")
    absmax_check(A, Pr, 8, "K1_kv_slow")
    def exps(rt, src):
        P, U = Pr[rt], Ur[rt]
        for i in range(16):
            A.e(f"v_exp_f32 v{U+i}, -v{src+i}")
            A.e(f"v_exp_f32 v{P+i}, v{P+i}")
    for rt in range(2): exps(rt, Pr[rt])
    A.label("K1_kv_common")
    A.e("s_nop 0")
    sp = [4, 10]; sn = [6, 14+2]
    sp = [4, 8]; sn = [6, 10]
    for rt in range(2):
        P, U = Pr[rt], Ur[rt]
        A.e(f"v_pk_add_f32 {vr(sp[rt],2)}, {vr(P,2)}, {vr(P+2,2)}")
        A.e(f"v_pk_add_f32 {vr(sn[rt],2)}, {vr(U,2)}, {vr(U+2,2)}")
        for i in range(4, 16, 2):
            A.e(f"v_pk_add_f32 {vr(sp[rt],2)}, {vr(sp[rt],2)}, {vr(P+i,2)}")
            A.e(f"v_pk_add_f32 {vr(sn[rt],2)}, {vr(sn[rt],2)}, {vr(U+i,2)}")
    for rt in range(2):
        A.e(f"v_add_f32 v{sp[rt]}, v{sp[rt]}, v{sp[rt]+1}")
        A.e(f"v_add_f32 v{sn[rt]}, v{sn[rt]}, v{sn[rt]+1}")
    for rt in range(2):
        A.e(f"v_permlane32_swap_b32 v{sp[rt]}, v{sn[rt]}")
    for rt in range(2):
        A.e(f"v_add_f32 v{sp[rt]}, v{sp[rt]}, v{sn[rt]}")
    for rt in range(2):
        A.e(f"v_rcp_f32 v{sp[rt]}, v{sp[rt]}")
    for rt in range(2):
        A.e(f"v_mov_b32 v{sn[rt]}, v{sp[rt]}")
    for rt in range(2):
        A.e(f"v_permlane32_swap_b32 v{sp[rt]}, v{sn[rt]}")
    for rt in range(2):
        P, U = Pr[rt], Ur[rt]
        for q in range(4):
            for i in (4 * q, 4 * q + 2):
                A.e(f"v_pk_mul_f32 {vr(P+i,2)}, {vr(P+i,2)}, {vr(sp[rt],2)} op_sel_hi:[1,0]")
                A.e(f"v_pk_mul_f32 {vr(U+i,2)}, {vr(U+i,2)}, {vr(sn[rt],2)} op_sel_hi:[1,0]")
            for i in (4 * q, 4 * q + 2):
                A.e(f"v_cvt_pk_bf16_f32 v{P+i//2}, v{P+i}, v{P+i+1}")
                A.e(f"v_cvt_pk_bf16_f32 v{U+i//2}, v{U+i}, v{U+i+1}")
            A.e(f"ds_write_b64 v1, {vr(P+2*q,2)} offset:{rt*32*PHI_PITCH + q*16}")
            A.e(f"ds_write_b64 v1, {vr(U+2*q,2)} offset:{rt*32*PHI_PITCH + 64 + q*16}")
    A.e("s_waitcnt lgkmcnt(0)")
    F = lambda ft, rt, t: 80 + ((ft * 2 + rt) * 2 + t) * 4
    for ft in range(2):
        for rt in range(2):
            for t in range(2):
                off = (rt * 32 + 16 * t) * PHI_PITCH + ft * 64
                A.e(f"ds_read_b64_tr_b16 {vr(F(ft,rt,t),2)}, v2 offset:{off}")
                A.e(f"ds_read_b64_tr_b16 {vr(F(ft,rt,t)+2,2)}, v2 offset:{off + 8*PHI_PITCH}")
    A.e("s_lshl_b32 s37, s36, 5")
    A.e("s_lshl_b32 s3, s35, 1")
    A.e("s_add_u32 s37, s37, s3")
    A.e("s_add_u32 s37, s37, s38")
    A.e("s_lshl_b32 s37, s37, 8")
    A.e(f"s_add_u32 s37, s37, {WS_ZP}")
    A.e("v_lshlrev_b32 v6, 2, v0")
    A.e("v_lshlrev_b32 v1, 4, v0")
    A.e("s_lshl_b32 s3, s39, 13")
    A.e(f"s_add_u32 s3, s3, {XB_BASE}")
    A.e("v_add_u32 v2, s3, v1")
    A.e("s_lshl_b32 s3, s36, 4")
    A.e("s_add_u32 s3, s3, s35")
    A.e("s_lshl_b32 s3, s3, 1")
    A.e("s_add_u32 s3, s3, s38")
    A.e("s_lshl_b32 s3, s3, 12")
    A.e(f"s_add_u32 s3, s3, {WS_KVP}")
    A.e("s_mov_b32 vcc_lo, 0")
    A.e("s_mov_b32 vcc_hi, -1")
    n = 0
    for ft in range(2):
        for rt in range(2):
            for t in range(2):
                n += 1
                A.e(f"s_waitcnt lgkmcnt({16 - 2*n})")
                first = "0" if (rt == 0 and t == 0) else None
                mfma32(A, KV[ft], F(ft, rt, t), ACC(rt, 1) + 4 * t, first)
                mfma16(A, ZS[ft], SEL, F(ft, rt, t), first)
    A.e(f"v_cndmask_b32 v4, v{ZS[0]}, v{ZS[1]}, vcc")
    A.e("buffer_store_dword v4, v6, s[24:27], s37 offen")
    A.e("s_cmp_eq_u32 s38, 0")
    A.e("s_nop 7")
    A.e("s_cbranch_scc0 K1_kv_wm1")
    hist = list(A.hist)
    for wm in range(2):
        if wm == 1:
            A.label("K1_kv_wm1")
            A.hist = list(hist)
        keep, send = KV[wm], KV[1 - wm]
        for rq in range(4):
            A.e(f"ds_write_b128 v2, {vr(send+4*rq,4)} offset:{(1-wm)*4096 + rq*1024}")
        A.e("s_waitcnt lgkmcnt(0)")
        A.e("s_barrier")
        for rq in range(4):
            A.e(f"ds_read_b128 {vr(80+4*rq,4)}, v2 offset:{wm*4096 + rq*1024}")
        for rq in range(4):
            A.e(f"s_waitcnt lgkmcnt({3-rq})")
            A.e(f"v_pk_add_f32 {vr(keep+4*rq,2)}, {vr(keep+4*rq,2)}, {vr(80+4*rq,2)}")
            A.e(f"v_pk_add_f32 {vr(keep+4*rq+2,2)}, {vr(keep+4*rq+2,2)}, {vr(80+4*rq+2,2)}")
            A.e(f"buffer_store_dwordx4 {vr(keep+4*rq,4)}, v1, s[24:27], s3 offen offset:{rq*1024}")
        if DBG:
            stamp(A, 4)
            A.e("s_waitcnt vmcnt(0)")
            stamp(A, 5)
            dbg_dump(A, 6)
        A.e("s_endpgm")
    A.label("K1_kv_slow")
    A.fence()
    for rt in range(2):
        true_shift(A, Pr[rt], Ur[rt], 4)
        exps(rt, Ur[rt])
    A.e("s_branch K1_kv_common")
```

```python
from asmlib import *
from gen_k1 import *
import os

K2_CH = 32768
K2_NB = 4
K2_KVS = K2_CH * K2_NB
K2_ZS = K2_KVS + 4096
K2_LDS = K2_ZS + 256
K2_VGPR = 208

Q = 8
KF = 16
VF = 24
SB = [32, 48]
CM = 64
PF = 80
OA_ = 88
LS = 104
SEL = 108
KVP = 112
ZP = 176
EQ = 180
LD = [196, 200]
T0 = 204
KT = KVP; ZF = KVP + 16; NUM = [KVP + 32, KVP + 48]
NLATE = 24

def gen_k2(A, name):
    kernel_header(A, name)
    A.e("s_cmp_ge_u32 s2, 256")
    A.e("s_cbranch_scc1 K2_end")
    stamp(A, 0)
    if DBG: A.e("s_memrealtime s[84:85]")
    A.e("s_load_dwordx2 s[60:61], s[0:1], 88")
    A.e("v_lshrrev_b32 v1, 6, v0")
    A.e("v_and_b32 v0, 63, v0")
    A.e("v_readfirstlane_b32 s34, v1")
    A.e("s_and_b32 s3, s2, 7")
    A.e("s_lshr_b32 s36, s2, 3")
    A.e("s_lshl_b32 s35, s3, 2")
    A.e("s_lshr_b32 s37, s36, 3")
    A.e("s_add_u32 s35, s35, s37")
    A.e("s_and_b32 s36, s36, 7")
    A.e("s_lshl_b32 s36, s36, 3")
    A.e("v_lshlrev_b32 v1, 4, v0")
    A.e("s_add_u32 s36, s36, s34")
    A.e("s_lshl_b32 s31, s34, 12")
    A.e(f"s_add_u32 s28, s31, {WS_KV}")
    A.e("s_lshl_b32 s38, s35, 17")
    A.e("s_lshl_b32 s39, s36, 11")
    A.e("s_add_u32 s38, s38, s39")
    A.e(f"s_add_u32 s39, s38, {WS_QB}")
    A.e("s_lshl_b32 s38, s38, 1")
    A.e("s_mov_b32 s26, %d" % WS_BYTES)
    A.e("s_mov_b32 s27, 0x00020000")
    A.e("s_mov_b32 m0, s31")
    A.e("s_waitcnt lgkmcnt(0)")
    A.e("s_mov_b32 s24, s60")
    A.e("s_and_b32 s25, s61, 0xffff")
    def dma1(i):
        A.e(f"buffer_load_dwordx4 v1, s[24:27], s28 offen offset:{i*1024} lds")
    def dma_next():
        A.e(f"s_add_u32 s31, s31, {K2_CH}")
        A.e(f"s_add_u32 s28, s28, {K2_CH}")
        A.e(f"s_and_b32 s31, s31, {K2_CH*K2_NB - 1}")
        A.e("s_mov_b32 m0, s31")
    for i in range(4): dma1(i)
    A.e(f"buffer_load_dwordx4 {vr(Q,4)}, v1, s[24:27], s39 offen")
    A.e(f"buffer_load_dwordx4 {vr(Q+4,4)}, v1, s[24:27], s39 offen offset:1024")
    for c in range(2):
        dma_next()
        for i in range(4): dma1(i)
    A.e("s_lshl_b32 s3, s35, 17")
    A.e("s_lshl_b32 s37, s34, 10")
    A.e("s_add_u32 s3, s3, s37")
    A.e(f"s_add_u32 s3, s3, {WS_KVP}")
    A.e("v_lshlrev_b32 v2, 2, v0")
    for m in range(16):
        A.e(f"buffer_load_dwordx4 {vr(KVP+4*m,4)}, v1, s[24:27], s3 offen")
        A.e("s_add_u32 s3, s3, 8192")
    A.e("s_lshl_b32 s3, s35, 13")
    A.e("s_add_u32 s3, s3, s37")
    A.e(f"s_add_u32 s3, s3, {WS_ZP}")
    for m in range(4):
        A.e(f"buffer_load_dword v{ZP+m}, v2, s[24:27], s3 offen offset:{m*256}")
    for i in range(4):
        A.e(f"buffer_load_dwordx4 {vr(EQ+4*i,4)}, v1, s[24:27], s38 offen offset:{i*1024}")
    stamp(A, 1)
    A.e("v_lshrrev_b32 v7, 5, v0")
    A.e("v_mov_b32 v3, 0")
    A.e(f"v_add_u32 v6, {K2_ZS}, v2")
    A.e("ds_write_b32 v6, v3")
    A.e("v_lshrrev_b32 v3, 2, v0")
    A.e("v_xor_b32 v3, v3, v0")
    A.e("v_and_b32 v3, 4, v3")
    A.e("v_and_b32 v4, 3, v0")
    A.e("v_or_b32 v3, v3, v4")
    A.e("v_cmp_eq_u32 vcc, 0, v3")
    A.e("v_cmp_eq_u32 s[66:67], 1, v3")
    A.e("v_mov_b32 v4, 0x3f803f80")
    A.e("v_mov_b32 v5, 0")
    for i in range(4):
        A.e(f"v_cndmask_b32 v{SEL+i}, v5, v4, vcc")
    for i in range(16):
        A.e(f"v_mov_b32 v{OA_+i}, 0")
    for i in range(4):
        A.e(f"v_mov_b32 v{LS+i}, 0")
        A.e(f"v_mov_b32 v{PF+4+i}, 0")
        A.e(f"v_mov_b32 v{VF+4+i}, 0")
    A.e("s_mov_b32 s32, 0")
    A.e("s_lshl_b32 s40, s36, 16")
    A.e("s_lshl_b32 s3, s35, 11")
    A.e("s_add_u32 s40, s40, s3")
    A.e(f"s_add_u32 s41, s40, {WS_OB}")
    A.e(f"s_add_u32 s40, s40, {WS_OA}")
    A.e("v_mov_b32 v5, v1")
    A.e(f"v_add_u32 v4, {K2_CH}, v1")
    A.e(f"s_waitcnt vmcnt({8 + NLATE}) lgkmcnt(0)")
    A.e("s_barrier")
    stamp(A, 2)
    A.e(f"ds_read_b128 {vr(KF,4)}, v5")
    A.e(f"ds_read_b128 {vr(KF+4,4)}, v5 offset:1024")
    A.e(f"ds_read_b128 {vr(VF,4)}, v5 offset:2048")
    A.e("s_waitcnt lgkmcnt(2)")
    mfma32(A, SB[0], KF, Q, "0")
    A.e("s_waitcnt lgkmcnt(1)")
    mfma32(A, SB[0], KF + 4, Q + 4)
    A.e(f"ds_read_b128 {vr(KF,4)}, v5 offset:4096")
    A.e(f"ds_read_b128 {vr(KF+4,4)}, v5 offset:{4096+1024}")
    S = SB[0]
    A.e(f"v_max3_f32 v{T0}, v{S}, v{S+1}, v{S+2}")
    for i in range(3, 15, 2):
        A.e(f"v_max3_f32 v{T0}, v{T0}, v{S+i}, v{S+i+1}")
    A.e(f"v_max_f32 v{T0}, v{T0}, v{S+15}")
    A.e(f"v_mov_b32 v{T0+1}, v{T0}")
    A.e(f"v_permlane32_swap_b32 v{T0}, v{T0+1}")
    A.e(f"v_max_f32 v{T0}, v{T0}, v{T0+1}")
    A.e(f"v_sub_f32 v{CM}, 0, v{T0}")
    for i in range(1, 16):
        A.e(f"v_mov_b32 v{CM+i}, v{CM}")
    for i in range(0, 16, 2):
        A.e(f"v_pk_add_f32 {vr(S+i,2)}, {vr(S+i,2)}, {vr(CM,2)}")
    A.e("s_waitcnt lgkmcnt(0)")

    A.raw(".p2align 6")
    A.label("K2_chunk")
    st = A.mark()
    A.e("s_cmp_lt_u32 s32, 2")
    A.e("s_cbranch_scc1 K2_wA")
    A.e("s_cmp_ge_u32 s32, 6")
    A.e("s_cbranch_scc1 K2_wB")
    A.e("s_waitcnt vmcnt(4)")
    A.e("s_barrier")
    A.e("s_cmp_eq_u32 s32, 2")
    A.e("s_cbranch_scc1 K2_blkR")
    A.e("s_cmp_eq_u32 s32, 3")
    A.e("s_cbranch_scc1 K2_blkL")
    A.e("s_cmp_eq_u32 s32, 4")
    A.e("s_cbranch_scc1 K2_blkZ")
    A.e("s_branch K2_blkF")
    A.label("K2_go")
    dma_next()
    A.e("s_cmp_ge_u32 s32, 5")
    for j in range(8):
        k2_tile(A, j, dma1)
    A.e("v_mov_b32 v5, v4")
    A.e(f"v_add_u32 v4, {K2_CH}, v4")
    A.e(f"v_and_b32 v4, {K2_CH*K2_NB - 1}, v4")
    A.e("s_add_u32 s32, s32, 1")
    A.e("s_cmp_lt_u32 s32, 8")
    A.e("s_cbranch_scc1 K2_chunk")
    A.check_loop(st, "K2")
    mfma32(A, OA_, VF + 4, PF + 4)
    mfma16(A, LS, SEL, PF + 4)
    stamp(A, 3)
    A.e(f"v_mov_b32 v3, {f2u(2.0**60):#x}")
    A.e(f"v_cmp_nlt_f32 vcc, v{LS}, v3")
    A.e(f"v_rcp_f32 v{T0}, v{LS}")
    A.e("s_nop 3")
    A.e("s_cmp_eq_u64 vcc, 0")
    A.e("s_cbranch_scc0 K2_fallback")
    A.label("K2_fin")
    for t in range(2):
        for i in range(8 * t, 8 * t + 8, 2):
            A.e(f"v_pk_mul_f32 {vr(OA_+i,2)}, {vr(OA_+i,2)}, {vr(T0,2)} op_sel_hi:[1,0]")
        for i in range(8 * t, 8 * t + 8, 2):
            A.e(f"v_cvt_pk_bf16_f32 v{OA_+i//2}, v{OA_+i}, v{OA_+i+1}")
        A.e(f"buffer_store_dwordx4 {vr(OA_+4*t,4)}, v1, s[24:27], s41 offen offset:{1024*t}")
    if DBG:
        stamp(A, 4)
        A.e("s_waitcnt vmcnt(0)")
        stamp(A, 5)
        dbg_dump(A, 6)
    A.e("s_endpgm")

    A.label("K2_wA")
    A.fence()
    A.e(f"s_waitcnt vmcnt({4 + NLATE})")
    A.e("s_barrier")
    A.e("s_branch K2_go")
    A.label("K2_wB")
    A.e("s_waitcnt vmcnt(0)")
    A.e("s_barrier")
    A.e("s_branch K2_go")
    A.label("K2_blkR")
    A.fence()
    for lvl in (8, 4, 2, 1):
        for m in range(lvl):
            A.e(f"v_pk_add_f32 {vr(KVP+4*m,2)}, {vr(KVP+4*m,2)}, {vr(KVP+4*(m+lvl),2)}")
            A.e(f"v_pk_add_f32 {vr(KVP+4*m+2,2)}, {vr(KVP+4*m+2,2)}, {vr(KVP+4*(m+lvl)+2,2)}")
    A.e(f"v_pk_add_f32 {vr(ZP,2)}, {vr(ZP,2)}, {vr(ZP+2,2)}")
    A.e(f"v_cvt_pk_bf16_f32 v{KVP}, v{KVP}, v{KVP+1}")
    A.e(f"v_cvt_pk_bf16_f32 v{KVP+1}, v{KVP+2}, v{KVP+3}")
    A.e(f"v_add_f32 v{ZP}, v{ZP}, v{ZP+1}")
    A.e("s_lshr_b32 s3, s34, 1")
    A.e("s_lshl_b32 s3, s3, 10")
    A.e("s_and_b32 s37, s34, 1")
    A.e("s_lshl_b32 s37, s37, 3")
    A.e("s_add_u32 s3, s3, s37")
    A.e(f"s_add_u32 s3, s3, {K2_KVS}")
    A.e("v_add_u32 v3, s3, v1")
    A.e(f"ds_write_b64 v3, {vr(KVP,2)}")
    A.e(f"ds_add_f32 v6, v{ZP}")
    A.e("s_branch K2_go")
    A.label("K2_blkL")
    A.fence()
    A.e(f"v_add_u32 v3, {K2_KVS}, v1")
    for i in range(4):
        A.e(f"ds_read_b128 {vr(KT+4*i,4)}, v3 offset:{i*1024}")
    A.e("v_lshlrev_b32 v3, 4, v7")
    A.e(f"v_add_u32 v3, {K2_ZS}, v3")
    for i in range(8):
        A.e(f"ds_read_b128 {vr(ZF+4*i,4)}, v3 offset:{i*32}")
    A.e("s_branch K2_go")
    A.label("K2_blkZ")
    A.fence()
    for ft in range(2):
        for t in range(2):
            i = ft * 2 + t
            mfma32(A, NUM[ft], KT + 4 * i, EQ + 4 * i, "0" if t == 0 else None) if False else None
    for i in range(16):
        A.e(f"v_cvt_pk_bf16_f32 v{ZF+i}, v{ZF+2*i}, v{ZF+2*i+1}")
    for ft in range(2):
        for t in range(2):
            i = ft * 2 + t
            mfma32(A, NUM[ft], KT + 4 * i, EQ + 4 * i, "0" if t == 0 else None)
            for r in range(4):
                A.e(f"v_cndmask_b32 v{ZF+4*i+r}, v{SEL}, v{ZF+4*i+r}, s[66:67]")
    for ft in range(2):
        for t in range(2):
            i = ft * 2 + t
            mfma16(A, LD[ft], ZF + 4 * i, EQ + 4 * i, "0" if t == 0 else None)
    A.e("s_branch K2_go")
    A.label("K2_blkF")
    A.fence()
    a, b = LD[0], LD[1]
    A.e(f"v_rcp_f32 v{a}, v{a}")
    A.e(f"v_rcp_f32 v{b}, v{b}")
    A.e(f"v_mov_b32 v{T0}, {f2u(1e-6):#x}")
    A.e(f"v_fmac_f32 v{T0}, v{a}, v{a+1}")
    A.e(f"v_fmac_f32 v{T0}, v{b}, v{b+1}")
    A.e(f"v_rcp_f32 v{T0}, v{T0}")
    A.e(f"v_mul_f32 v{a}, v{a}, v{T0}")
    A.e(f"v_mul_f32 v{b}, v{b}, v{T0}")
    for t in range(2):
        for i in range(8 * t, 8 * t + 8, 2):
            A.e(f"v_pk_mul_f32 {vr(NUM[0]+i,2)}, {vr(NUM[0]+i,2)}, {vr(a,2)} op_sel_hi:[1,0]")
        for i in range(8 * t, 8 * t + 8, 2):
            A.e(f"v_pk_fma_f32 {vr(NUM[0]+i,2)}, {vr(NUM[1]+i,2)}, {vr(b,2)}, {vr(NUM[0]+i,2)} op_sel_hi:[1,0,1]")
        for i in range(8 * t, 8 * t + 8, 2):
            A.e(f"v_cvt_pk_bf16_f32 v{NUM[0]+i//2}, v{NUM[0]+i}, v{NUM[0]+i+1}")
        A.e(f"buffer_store_dwordx4 {vr(NUM[0]+4*t,4)}, v1, s[24:27], s40 offen offset:{1024*t}")
    A.e("s_branch K2_go")

    A.label("K2_fallback")
    A.fence()
    A.e("s_waitcnt vmcnt(0) lgkmcnt(0)")
    A.e(f"s_mov_b32 s28, {WS_KV}")
    A.e(f"v_mov_b32 v{T0}, 0xff800000")
    A.label("K2_fb1")
    st = A.mark()
    A.e(f"buffer_load_dwordx4 {vr(KF,4)}, v1, s[24:27], s28 offen")
    A.e(f"buffer_load_dwordx4 {vr(KF+4,4)}, v1, s[24:27], s28 offen offset:1024")
    A.e("s_add_u32 s28, s28, 4096")
    A.e("s_waitcnt vmcnt(0)")
    mfma32(A, SB[0], KF, Q, "0")
    mfma32(A, SB[0], KF + 4, Q + 4)
    for i in range(0, 16, 2):
        A.e(f"v_max3_f32 v{T0}, v{T0}, v{SB[0]+i}, v{SB[0]+i+1}")
    A.e(f"s_cmp_lt_u32 s28, {WS_KV + 262144}")
    A.e("s_cbranch_scc1 K2_fb1")
    A.check_loop(st, "fb1")
    A.e(f"v_mov_b32 v{T0+1}, v{T0}")
    A.e(f"v_permlane32_swap_b32 v{T0}, v{T0+1}")
    A.e(f"v_max_f32 v{T0}, v{T0}, v{T0+1}")
    for i in range(16):
        A.e(f"v_sub_f32 v{CM+i}, 0, v{T0}")
        A.e(f"v_mov_b32 v{OA_+i}, 0")
    for i in range(4):
        A.e(f"v_mov_b32 v{LS+i}, 0")
    A.e(f"s_mov_b32 s28, {WS_KV}")
    A.label("K2_fb2")
    st = A.mark()
    for i in range(4):
        A.e(f"buffer_load_dwordx4 {vr(KF+4*i,4)}, v1, s[24:27], s28 offen offset:{i*1024}")
    A.e("s_add_u32 s28, s28, 4096")
    A.e("s_waitcnt vmcnt(0)")
    mfma32(A, SB[0], KF, Q, CM)
    mfma32(A, SB[0], KF + 4, Q + 4)
    for i in range(16):
        A.e(f"v_exp_f32 v{SB[0]+i}, v{SB[0]+i}")
    for i in range(8):
        A.e(f"v_cvt_pk_bf16_f32 v{PF+i}, v{SB[0]+2*i}, v{SB[0]+2*i+1}")
    mfma32(A, OA_, VF, PF)
    mfma32(A, OA_, VF + 4, PF + 4)
    mfma16(A, LS, SEL, PF)
    mfma16(A, LS, SEL, PF + 4)
    A.e(f"s_cmp_lt_u32 s28, {WS_KV + 262144}")
    A.e("s_nop 7")
    A.e("s_cbranch_scc1 K2_fb2")
    A.check_loop(st, "fb2")
    A.e("s_nop 15")
    A.e(f"v_rcp_f32 v{T0}, v{LS}")
    A.e("s_nop 1")
    A.e("s_branch K2_fin")
    A.label("K2_end")
    A.e("s_endpgm")

def k2_tile(A, j, dma1):
    S, N = SB[j & 1], SB[(j + 1) & 1]
    def ex(a, b):
        for i in range(a, b): A.e(f"v_exp_f32 v{S+i}, v{S+i}")
    def cv(a, b):
        for i in range(a, b): A.e(f"v_cvt_pk_bf16_f32 v{PF+i}, v{S+2*i}, v{S+2*i+1}")
    def rd(reg, t, off):
        r, o = ("v5", t * 4096) if t < 8 else ("v4", (t - 8) * 4096)
        A.e(f"ds_read_b128 {vr(reg,4)}, {r} offset:{o+off}")
    mfma32(A, N, KF, Q, CM); rd(KF, j + 2, 0); ex(0, 4)
    mfma32(A, OA_, VF + 4, PF + 4); rd(VF + 4, j, 3072); ex(4, 8)
    mfma32(A, N, KF + 4, Q + 4); rd(KF + 4, j + 2, 1024); cv(0, 4); ex(8, 10)
    mfma16(A, LS, SEL, PF + 4); A.e("s_waitcnt lgkmcnt(3)")
    ex(10, 12)
    mfma32(A, OA_, VF, PF); rd(VF, j + 1, 2048)
    if j < 4:
        L = A.newlabel("K2_nd")
        A.e(f"s_cbranch_scc1 {L}")
        dma1(j)
        A.label(L)
    ex(12, 16)
    mfma16(A, LS, SEL, PF); A.e("s_waitcnt lgkmcnt(1)")
    cv(4, 8)
```

```python
import re, os
STB = os.environ.get("STB", "sc1")

TRANS = ("v_exp_f32", "v_log_f32", "v_rcp_f32", "v_rsq_f32", "v_sqrt_f32", "v_sin_f32", "v_cos_f32")

def _regs(tok):
    tok = tok.strip()
    neg = tok.startswith("-")
    if neg: tok = tok[1:]
    if tok.startswith("|") and tok.endswith("|"): tok = tok[1:-1]
    m = re.fullmatch(r"([vsa])(\d+)", tok)
    if m: return m.group(1), {int(m.group(2))}
    m = re.fullmatch(r"([vsa])\[(\d+):(\d+)\]", tok)
    if m: return m.group(1), set(range(int(m.group(2)), int(m.group(3)) + 1))
    if tok == "vcc": return "s", {106, 107}
    if tok == "m0": return "s", {124}
    if tok == "exec": return "s", {126, 127}
    return None, set()

class Ins:
    __slots__ = ("text", "op", "cls", "vw", "vr", "sw", "sr", "a", "b", "c", "d", "passes", "ws", "lds", "wide")
    def __init__(self, text):
        self.text = text
        t = text.split(";")[0].strip()
        parts = t.split(None, 1)
        self.op = op = parts[0]
        rest = parts[1] if len(parts) > 1 else ""
        ops = [o.strip() for o in re.split(r",(?![^\[]*\])", rest)] if rest else []
        mods = ""
        if ops:
            lp = ops[-1].split(None, 1)
            ops[-1] = lp[0]
            mods = lp[1] if len(lp) > 1 else ""
        self.vw, self.vr, self.sw, self.sr = set(), set(), set(), set()
        self.a = self.b = self.c = self.d = set()
        self.passes = 0
        self.ws = 1
        self.lds = False
        self.wide = False
        def rd(tok):
            k, s = _regs(tok)
            if k == "v": self.vr |= s
            elif k == "s": self.sr |= s
        def wr(tok):
            k, s = _regs(tok)
            if k == "v": self.vw |= s
            elif k == "s": self.sw |= s
        if op == "s_nop":
            self.cls = "nop"; self.ws = int(ops[0], 0) + 1
        elif op.startswith("v_mfma"):
            self.cls = "mfma"
            self.passes = 8 if "32x32x16" in op else 4 if "16x16x32" in op else None
            assert self.passes
            self.d = _regs(ops[0])[1]; self.a = _regs(ops[1])[1]; self.b = _regs(ops[2])[1]
            k, s = _regs(ops[3]); self.c = s if k == "v" else set()
            self.vw = set(self.d); self.vr = self.a | self.b | self.c
        elif op.startswith("v_"):
            self.cls = "valu"
            if op.startswith("v_permlane"):
                for o in ops[:2]: wr(o); rd(o)
                self.cls = "permlane"
            else:
                wr(ops[0])
                for o in ops[1:]: rd(o)
                base = op.replace("_e32", "").replace("_e64", "")
                if base in ("v_fmac_f32", "v_pk_fmac_f16", "v_dot2c_f32_bf16"): rd(ops[0])
                if base in TRANS: self.cls = "trans"
                if base.startswith("v_dot"): self.cls = "dot"
                if base.startswith("v_readfirstlane") or base.startswith("v_readlane"): self.cls = "rdlane"
                if base.startswith("v_cndmask") and len(ops) == 3: self.sr |= {106, 107}
                if "dpp" in mods or "row_" in mods or "quad_perm" in mods: self.cls = "dpp"
        elif op.startswith("ds_"):
            self.cls = "ds"
            if op.startswith("ds_read") or op.startswith("ds_bpermute") or op.startswith("ds_permute") or "_rtn" in op or op.startswith("ds_swizzle"):
                wr(ops[0])
                for o in ops[1:]: rd(o)
            else:
                for o in ops: rd(o)
        elif op.startswith("buffer_") or op.startswith("global_"):
            self.cls = "vmem"
            allm = (mods + " " + " ".join(ops)).split()
            if "lds" in mods.split():
                self.lds = True
                for o in ops: rd(o)
                self.sr |= {124}
            elif "_load" in op:
                wr(ops[0])
                if "d16" in op: rd(ops[0])
                for o in ops[1:]: rd(o)
            else:
                for o in ops: rd(o)
                if "x3" in op or "x4" in op:
                    self.wide = True
                    self.a = _regs(ops[0] if op.startswith("buffer_") else ops[1])[1]
        elif op.startswith("s_"):
            self.cls = "salu"
            if op.startswith(("s_cmp", "s_cbranch", "s_branch", "s_waitcnt", "s_barrier", "s_endpgm", "s_setprio", "s_sleep", "s_bitcmp")):
                for o in ops: rd(o)
            else:
                if ops: wr(ops[0])
                for o in ops[1:]: rd(o)
        else:
            raise ValueError("unknown op " + text)

def need(p, c):
    n = 0
    valu_c = c.cls in ("valu", "trans", "permlane", "dot", "rdlane", "dpp")
    valu_p = p.cls in ("valu", "trans", "permlane", "dot", "rdlane", "dpp")
    if p.cls == "mfma":
        big = p.passes == 8
        if c.cls == "mfma":
            if p.d & (c.a | c.b): n = max(n, 12 if big else 8)
            if p.d & c.c and not (p.d == c.c and p.passes == c.passes): n = max(n, 10 if big else 6)
            if p.d & c.d and not (p.d == c.c and p.passes == c.passes): n = max(n, 10 if big else 6)
        elif valu_c or c.cls in ("ds", "vmem"):
            if p.d & (c.vr | c.vw): n = max(n, 12 if big else 8)
            if valu_c and (p.c & c.vw): n = max(n, 7 if big else 3)
    elif valu_p:
        if c.cls == "mfma" and p.vw & c.vr: n = max(n, 2)
        if p.cls == "trans" and valu_c and c.cls != "trans" and p.vw & (c.vr | c.vw): n = max(n, 1)
        if p.cls == "trans" and c.cls in ("ds", "vmem") and p.vw & c.vr: n = max(n, 1)
        if c.cls in ("permlane", "dpp") and p.vw & c.vr: n = max(n, 2)
        if c.cls == "rdlane" and p.vw & c.vr: n = max(n, 1)
        if p.cls == "dot":
            if p.vw & (c.vr | c.vw):
                same = c.cls == "dot" and c.op == p.op
                if not same: n = max(n, 3)
                else:
                    toks = [o.strip() for o in re.split(r",(?![^\[]*\])", c.text.split(None, 1)[1])]
                    ab = _regs(toks[1])[1] | _regs(toks[2])[1]
                    if p.vw & ab: n = max(n, 3)
        if p.sw:
            if c.cls == "vmem" and p.sw & c.sr: n = max(n, 5)
            if valu_c and p.sw & c.sr: n = max(n, 2 if c.cls != "rdlane" else 4)
            if c.cls == "salu" and p.sw & c.sr: n = max(n, 1)
    elif p.cls == "salu":
        if 124 in p.sw and c.lds: n = max(n, 1)
    elif p.cls == "vmem" and p.wide:
        if p.a & c.vw: n = max(n, 2 if valu_c else 1)
    return n

class Asm:
    def __init__(self):
        self.lines = []
        self.lbl = 0
        self.hist = []
        self.nops = 0
        self.stb = STB
    def _pad(self, ins):
        dist = 0
        req = 0
        for p in reversed(self.hist):
            r = need(p, ins) - dist
            if r > req: req = r
            dist += p.ws
            if dist > 24: break
        return req
    def e(self, s):
        if self.stb and s.startswith("buffer_store") and "s[92:95]" not in s and "sc1" not in s:
            s = s + " " + self.stb
        ins = Ins(s)
        req = self._pad(ins)
        if req > 0:
            nop = Ins(f"s_nop {req-1}")
            self.lines.append(("i", nop.text + "  ; auto"))
            self.hist.append(nop)
            self.nops += 1
        self.lines.append(("i", s))
        self.hist.append(ins)
        if len(self.hist) > 64: self.hist = self.hist[-40:]
    def c(self, s):
        self.lines.append(("c", "; " + s))
    def label(self, name):
        self.lines.append(("l", name + ":"))
    def raw(self, s):
        self.lines.append(("r", s))
    def newlabel(self, base="L"):
        self.lbl += 1
        return f"{base}_{self.lbl}"
    def fence(self):
        self.hist = []
    def mark(self):
        return len(self.lines)
    def check_loop(self, start, name=""):
        body = [Ins(t.split("  ; auto")[0]) for k, t in self.lines[start:] if k == "i"]
        seq = body + body
        for i in range(len(body), len(seq)):
            dist = 0
            for j in range(i - 1, max(-1, i - 40), -1):
                if j >= len(body):
                    dist += seq[j].ws; continue
                r = need(seq[j], seq[i]) - dist
                if r > 0:
                    raise RuntimeError(f"loop {name} back-edge hazard: '{seq[j].text}' -> '{seq[i].text}' short by {r}")
                dist += seq[j].ws
    def text(self):
        out = []
        for k, t in self.lines:
            out.append(t if k in ("l", "r") else "    " + t)
        return "\n".join(out) + "\n"

def vr(a, n=1):
    return f"v{a}" if n == 1 else f"v[{a}:{a+n-1}]"
def sr(a, n=1):
    return f"s{a}" if n == 1 else f"s[{a}:{a+n-1}]"

def kernel_header(A, name):
    A.raw(".text")
    A.raw(f".globl {name}")
    A.raw(".p2align 8")
    A.raw(f".type {name},@function")
    A.label(name)
    A.fence()

def kernel_desc(name, vgpr, sgpr=102):
    acc = min(256, (vgpr + 3) // 4 * 4)
    return f""".p2align 6
.amdhsa_kernel {name}
  .amdhsa_next_free_vgpr {vgpr}
  .amdhsa_next_free_sgpr {sgpr}
  .amdhsa_accum_offset {acc}
  .amdhsa_group_segment_fixed_size 0
  .amdhsa_kernarg_size 96
  .amdhsa_user_sgpr_count 2
  .amdhsa_user_sgpr_kernarg_segment_ptr 1
  .amdhsa_system_sgpr_workgroup_id_x 1
.end_amdhsa_kernel
"""

def srd(A, d, ptr_lo, nbytes, delta=0):
    if delta == 0:
        A.e(f"s_mov_b32 s{d}, s{ptr_lo}")
        A.e(f"s_and_b32 s{d+1}, s{ptr_lo+1}, 0xffff")
    elif isinstance(delta, int) and delta < 0:
        A.e(f"s_sub_u32 s{d}, s{ptr_lo}, {-delta}")
        A.e(f"s_subb_u32 s{d+1}, s{ptr_lo+1}, 0")
        A.e(f"s_and_b32 s{d+1}, s{d+1}, 0xffff")
    else:
        A.e(f"s_add_u32 s{d}, s{ptr_lo}, {delta}")
        A.e(f"s_addc_u32 s{d+1}, s{ptr_lo+1}, 0")
        A.e(f"s_and_b32 s{d+1}, s{d+1}, 0xffff")
    A.e(f"s_mov_b32 s{d+2}, {nbytes}")
    A.e(f"s_mov_b32 s{d+3}, 0x00020000")

def mfma32(A, d, a, b, c=None):
    cs = vr(d, 16) if c is None else "0" if c == "0" else vr(c, 16)
    A.e(f"v_mfma_f32_32x32x16_bf16 {vr(d,16)}, {vr(a,4)}, {vr(b,4)}, {cs}")

def mfma16(A, d, a, b, c=None):
    cs = vr(d, 4) if c is None else "0" if c == "0" else vr(c, 4)
    A.e(f"v_mfma_f32_16x16x32_bf16 {vr(d,4)}, {vr(a,4)}, {vr(b,4)}, {cs}")
```

```python
from asmlib import *
import struct

WS_EQ = 0; WS_QB = 8 << 20; WS_KV = 12 << 20; WS_KVP = 13 << 20; WS_ZP = 17 << 20
WS_OA = 18 << 20; WS_OB = 22 << 20; WS_BYTES = 26 << 20
SAFE = 60.0
LOG2E = 1.4426950408889634
def f2u(x): return struct.unpack("<I", struct.pack("<f", x))[0]

K1_WSLOT = 3328
K1_SLOT = 8 * K1_WSLOT
K1_NS = 6
K1_LDS = K1_SLOT * K1_NS
K1_VGPR = 192

import os
DBG = int(os.environ.get("K1DBG", "0"))
NODMA = int(os.environ.get("NODMA", "0"))
NOMFMA = int(os.environ.get("NOMFMA", "0"))
NOLDS = int(os.environ.get("NOLDS", "0"))
def stamp(A, i):
    if DBG:
        A.e(f"s_memtime s[{70+2*i}:{71+2*i}]")
def dbg_dump(A, n):
    if not DBG: return
    L = A.newlabel("dbgskip")
    A.e("s_memrealtime s[86:87]")
    A.e("s_waitcnt lgkmcnt(0)")
    A.e("s_lshr_b32 s3, s2, 3")
    A.e(f"s_cmp_lg_u32 s3, {DBG-1}")
    A.e(f"s_cbranch_scc1 {L}")
    A.e("s_cmp_lg_u32 s34, 0")
    A.e(f"s_cbranch_scc1 {L}")
    A.e("s_load_dwordx2 s[88:89], s[0:1], 80")
    A.e("s_waitcnt lgkmcnt(0)")
    srd(A, 92, 88, 256)
    A.e("s_and_b32 s3, s2, 7")
    A.e("s_lshl_b32 s3, s3, 5")
    A.e("v_mov_b32 v1, 0")
    for i in range(1, n):
        A.e(f"s_sub_u32 s{70+2*i}, s{70+2*i}, s70")
        A.e(f"v_mov_b32 v2, s{70+2*i}")
        A.e(f"buffer_store_dword v2, v1, s[92:95], s3 offen offset:{4*i}")
    A.e("s_sub_u32 s86, s86, s84")
    A.e("v_mov_b32 v2, s86")
    A.e(f"buffer_store_dword v2, v1, s[92:95], s3 offen offset:28")
    A.label(L)

def gen_k1(A, name):
    kernel_header(A, name)
    Lend = "K1_end"
    A.e("s_cmp_ge_u32 s2, 256")
    A.e(f"s_cbranch_scc1 {Lend}")
    stamp(A, 0)
    if DBG: A.e("s_memrealtime s[84:85]")
    A.e("s_load_dwordx16 s[44:59], s[0:1], 0")
    A.e("s_load_dwordx2 s[60:61], s[0:1], 88")
    A.e("v_lshrrev_b32 v1, 6, v0")
    A.e("v_and_b32 v0, 63, v0")
    A.e("v_readfirstlane_b32 s34, v1")
    A.e("s_and_b32 s3, s2, 7")
    A.e("s_lshr_b32 s36, s2, 3")
    A.e("s_and_b32 s35, s3, 1")
    A.e("s_lshl_b32 s35, s35, 3")
    A.e("s_and_b32 s37, s36, 7")
    A.e("s_add_u32 s35, s35, s37")
    A.e("s_lshr_b32 s40, s3, 1")
    A.e("s_lshl_b32 s40, s40, 2")
    A.e("s_lshr_b32 s37, s36, 3")
    A.e("s_add_u32 s40, s40, s37")
    A.e("s_lshr_b32 s38, s34, 2")
    A.e("s_and_b32 s39, s34, 3")
    A.e("v_and_b32 v10, 15, v0")
    A.e("v_lshlrev_b32 v5, 6, v10")
    A.e("v_bfe_u32 v11, v0, 4, 1")
    A.e(f"v_mul_u32_u24 v11, {K1_WSLOT}, v11")
    A.e("v_add_u32 v5, v5, v11")
    A.e(f"s_mul_i32 s3, s38, {4*K1_WSLOT}")
    A.e("v_add_u32 v5, s3, v5")
    A.e("v_bfe_u32 v12, v0, 2, 2")
    A.e("v_lshrrev_b32 v13, 5, v0")
    A.e("v_xor_b32 v14, v13, v12")
    A.e("v_xor_b32 v15, 2, v14")
    A.e("v_lshl_add_u32 v6, v15, 4, v5")
    A.e("v_lshl_add_u32 v5, v14, 4, v5")
    A.e(f"v_mul_u32_u24 v7, {2*K1_WSLOT}, v13")
    A.e("v_lshl_add_u32 v7, v12, 6, v7")
    A.e("v_bfe_u32 v11, v0, 4, 1")
    A.e("v_lshl_add_u32 v7, v11, 5, v7")
    A.e("v_and_b32 v14, 3, v0")
    A.e("v_lshl_add_u32 v7, v14, 3, v7")
    A.e("s_lshl_b32 s3, s39, 8")
    A.e("s_add_u32 s3, s3, 1024")
    A.e("v_add_u32 v7, s3, v7")
    A.e("v_lshrrev_b32 v2, 2, v0")
    A.e("s_lshl_b32 s3, s35, 7")
    A.e("s_lshl_b32 s37, s34, 4")
    A.e("s_add_u32 s3, s3, s37")
    A.e("v_add_u32 v2, s3, v2")
    A.e("v_lshlrev_b32 v2, 11, v2")
    A.e("v_bfe_u32 v15, v0, 4, 2")
    A.e("v_xor_b32 v15, v15, v14")
    A.e("v_lshl_add_u32 v2, v15, 4, v2")
    A.e("v_lshrrev_b32 v3, 4, v0")
    A.e("v_lshlrev_b32 v3, 6, v3")
    A.e("v_lshl_add_u32 v3, v14, 4, v3")
    A.e("s_lshl_b32 s3, s34, 2")
    A.e("v_add_u32 v1, s3, v12")
    A.e(f"s_mul_i32 s31, s34, {K1_WSLOT}")
    A.e(f"s_add_u32 s41, s31, {K1_LDS}")
    ROT = os.environ.get("ROT", "")
    if ROT == "xcd":
        A.e("s_and_b32 s65, s2, 7"); A.e("s_lshl_b32 s65, s65, 2")
    elif ROT == "mt":
        A.e("s_and_b32 s65, s35, 7"); A.e("s_lshl_b32 s65, s65, 2")
    elif ROT == "nt":
        A.e("s_and_b32 s65, s40, 3"); A.e("s_lshl_b32 s65, s65, 3")
    elif ROT == "wg":
        A.e("s_lshr_b32 s65, s2, 3")
    elif ROT == "xcd2":
        A.e("s_and_b32 s65, s2, 7"); A.e("s_lshl_b32 s65, s65, 1")
    else:
        A.e("s_mov_b32 s65, 0")
    A.e("s_lshl_b32 s28, s65, 6")
    A.e("s_lshl_b32 s30, s65, 11")
    A.e("s_mov_b32 s32, 0")
    A.e("s_mov_b32 s43, 0")
    A.e(f"s_mov_b32 s64, {(-5*K1_SLOT) & 0xffffffff}")
    for r in range(16, 80):
        A.e(f"v_mov_b32 v{r}, 0")
    A.e("s_waitcnt lgkmcnt(0)")
    srd(A, 24, 60, WS_BYTES)
    A.e("s_cmp_lt_u32 s40, 4")
    A.e("s_cbranch_scc1 K1_T0")
    A.e("s_cmp_lt_u32 s40, 12")
    A.e("s_cbranch_scc1 K1_T1")
    A.e("s_cmp_lt_u32 s40, 14")
    A.e("s_cbranch_scc1 K1_T2")
    A.e("s_branch K1_T3")
    for T in range(4):
        A.label(f"K1_T{T}")
        A.fence()
        k1_type(A, T)
        A.e("s_endpgm")
    A.label(Lend)
    A.e("s_endpgm")

ACC = lambda rt, ct: 16 + (rt * 2 + ct) * 16
WPK = 156

def k1_type(A, T):
    isB = T >= 2
    pitch = 2048 if isB else 6144
    wbytes = 1024 * pitch
    D = 4 if isB else 3
    xptr = 52 if isB else 44
    wptr = 54 if isB else 46
    if T == 0:
        A.e("s_lshl_b32 s42, s40, 9")
        A.e("s_add_u32 s37, s42, 256")
    elif T == 1:
        A.e("s_sub_u32 s3, s40, 4")
        A.e("s_lshl_b32 s3, s3, 8")
        A.e("s_add_u32 s42, s3, 2048")
        A.e("s_add_u32 s37, s3, 4096")
    else:
        A.e("s_sub_u32 s3, s40, 12")
        A.e("s_lshl_b32 s42, s3, 9")
        A.e("s_add_u32 s37, s42, 256")
    srd(A, 8, xptr, 2048 * 2048)
    for (d, cb, off) in ((12, 42, 1024), (16, 37, 2048)):
        A.e(f"s_add_u32 s{d}, s{wptr}, s{cb}")
        A.e(f"s_addc_u32 s{d+1}, s{wptr+1}, 0")
        A.e(f"s_sub_u32 s{d}, s{d}, {off}")
        A.e(f"s_subb_u32 s{d+1}, s{d+1}, 0")
        A.e(f"s_and_b32 s{d+1}, s{d+1}, 0xffff")
        A.e(f"s_sub_u32 s{d+2}, {wbytes + off}, s{cb}")
        A.e(f"s_mov_b32 s{d+3}, 0x00020000")
    A.e(f"s_mul_i32 s29, s65, {32*pitch}")
    A.e(f"v_mul_u32_u24 v1, {pitch}, v1")
    A.e("v_add_u32 v3, v3, v1")
    if isB:
        srd(A, 20, 56 if T == 2 else 58, 65536 + 3072, -3072)
        A.e("s_lshl_b32 s3, s34, 8")
        A.e("v_lshl_add_u32 v4, v0, 2, s3")
        A.e("v_lshrrev_b32 v8, 4, v0")
        A.e("v_xor_b32 v8, v8, v12")
        A.e("v_lshlrev_b32 v8, 4, v8")
        A.e("v_lshl_add_u32 v8, v10, 6, v8")
        A.e("v_add_u32 v8, s31, v8")
        A.e("v_lshrrev_b32 v9, 4, v0")
        A.e(f"v_mul_u32_u24 v9, {2*K1_WSLOT}, v9")
        A.e("v_lshl_add_u32 v9, v12, 6, v9")
        A.e("v_lshl_add_u32 v9, v14, 3, v9")
        A.e("s_and_b32 s3, s40, 1")
        A.e("s_lshl_b32 s3, s3, 5")
        A.e("s_add_u32 s3, s3, 3072")
        A.e("v_add_u32 v9, s3, v9")
        for r in range(120, 124):
            A.e(f"v_mov_b32 v{r}, 0")
    if T <= 1:
        srd(A, 20, 48, 65536)
        if T == 1:
            A.e("s_sub_u32 s3, s40, 4")
            A.e("s_lshl_b32 s3, s3, 2")
            A.e("s_add_u32 s36, s3, s39")
        else:
            A.e("s_lshl_b32 s3, s40, 3")
            A.e("s_add_u32 s36, s3, s39")
        A.e("s_lshl_b32 s3, s36, 11")
        A.e("v_and_b32 v8, 31, v0")
        A.e("v_lshlrev_b32 v8, 1, v8")
        A.e("v_lshl_add_u32 v8, v13, 8, v8")
        for ct in range(2 if T == 0 else 1):
            if ct: A.e("s_add_u32 s3, s3, 8192")
            for t in range(2):
                for j in range(8):
                    d = 16 * t + 8 * (j >> 2) + (j & 3)
                    A.e(f"buffer_load_ushort v{124 + ct*16 + t*8 + j}, v8, s[20:23], s3 offen offset:{d*64}")

    def dma():
        A.e("s_mov_b32 m0, s31")
        A.e(f"s_add_u32 s31, s31, {K1_SLOT}")
        A.e("buffer_load_dwordx4 v2, s[8:11], s28 offen lds")
        A.e("buffer_load_dwordx4 v3, s[12:15], s29 offen offset:1024 lds")
        A.e("buffer_load_dwordx4 v3, s[16:19], s29 offen offset:2048 lds")
        if isB:
            A.e("buffer_load_dword v4, s[20:23], s30 offen offset:3072 lds")
            A.e("s_add_u32 s30, s30, 2048")
            A.e("s_and_b32 s30, s30, 65535")
        A.e("s_add_u32 s28, s28, 64")
        A.e("s_and_b32 s28, s28, 2047")
        A.e(f"s_add_u32 s29, s29, {32*pitch}")
        A.e(f"s_cmp_eq_u32 s29, {1024*pitch}")
        A.e("s_cselect_b32 s29, 0, s29")
        A.e("s_cmp_ge_u32 s31, s41")
        A.e(f"s_cselect_b32 s3, {K1_LDS}, 0")
        A.e("s_sub_u32 s31, s31, s3")

    S = [dict(X=[80, 84], W=[88, 92]), dict(X=[96, 100], W=[104, 108])]
    def rdX(t, rt):
        return f"ds_read_b128 {vr(S[t]['X'][rt],4)}, v{5+t} offset:{rt*2*K1_WSLOT}"
    def rdW(t, ct, h):
        return f"ds_read_b64_tr_b16 {vr(S[t]['W'][ct]+2*h,2)}, v7 offset:{t*4*K1_WSLOT + h*K1_WSLOT + ct*1024}"
    def mm(t, rt, ct):
        x, w = S[t]['X'][rt], S[t]['W'][ct]
        if NOMFMA: return
        if os.environ.get("M16"):
            mfma16(A, ACC(rt, ct) + 8*t, w, x); mfma16(A, ACC(rt, ct) + 8*t + 4, x, w); return
        if T == 1 and ct == 1: mfma32(A, ACC(rt, ct), x, w)
        else: mfma32(A, ACC(rt, ct), w, x)

    for s in range(5):
        dma()
    XPF = int(os.environ.get("XPF", "0"))
    npf = 0
    if XPF & 3:
        A.e("s_lshl_b32 s3, s35, 2")
        A.e("s_and_b32 s33, s40, 3")
        A.e("s_add_u32 s3, s3, s33")
        A.e("s_lshl_b32 s3, s3, 3")
        A.e("s_add_u32 s3, s3, s34")
        A.e("s_lshl_b32 s3, s3, 13")
        if XPF & 1:
            A.e("v_lshlrev_b32 v189, 7, v0")
            A.e("buffer_load_dword v188, v189, s[8:11], s3 offen"); npf += 1
        else:
            A.e("v_lshlrev_b32 v189, 6, v0")
            A.e("buffer_load_dword v188, v189, s[8:11], s3 offen"); npf += 1
            A.e("s_add_u32 s3, s3, 4096")
            A.e("buffer_load_dword v188, v189, s[8:11], s3 offen"); npf += 1
    if XPF & 4:
        A.e("s_and_b32 s3, s35, 7")
        A.e("s_lshl_b32 s3, s3, 3")
        A.e("s_add_u32 s3, s3, s34")
        A.e(f"s_mul_i32 s3, s3, {16*pitch}")
        A.e("v_lshrrev_b32 v190, 2, v0")
        A.e(f"v_mul_u32_u24 v190, {pitch}, v190")
        A.e("v_and_b32 v191, 1, v0")
        A.e("v_lshl_add_u32 v190, v191, 7, v190")
        A.e("v_bfe_u32 v191, v0, 1, 1")
        A.e(f"v_lshl_add_u32 v190, v191, {11 if T == 1 else 8}, v190")
        A.e("buffer_load_dword v188, v190, s[12:15], s3 offen offset:1024"); npf += 1
    stamp(A, 1)
    if T <= 1:
        A.e(f"s_mov_b32 s62, {f2u(LOG2E):#x}")
        A.e(f"s_mov_b32 s63, {f2u(LOG2E):#x}")
        A.e(f"s_waitcnt vmcnt({5*D+npf})")
        n = 32 if T == 0 else 16
        for i in range(n):
            A.e(f"v_lshlrev_b32 v{124+i}, 16, v{124+i}")
        for i in range(0, n, 2):
            A.e(f"v_pk_mul_f32 {vr(124+i,2)}, {vr(124+i,2)}, s[62:63]")
        for i in range(0, n, 2):
            A.e(f"v_cvt_pk_bf16_f32 v{WPK+i//2}, v{124+i}, v{124+i+1}")
    A.e(f"s_waitcnt vmcnt({4*D+npf})")
    A.e("s_barrier")
    stamp(A, 2)
    for q in (rdX(0, 0), rdW(0, 0, 0), rdW(0, 0, 1), rdW(0, 1, 0), rdW(0, 1, 1), rdX(0, 1)):
        A.e(q)
    L = f"K1_T{T}_loop"
    A.raw(".p2align 6")
    A.label(L)
    st = A.mark()
    A.e("s_waitcnt lgkmcnt(0)")
    mm(0, 0, 0); A.e(rdX(1, 0)); A.e(rdW(1, 0, 0))
    mm(0, 0, 1); A.e(rdW(1, 0, 1)); A.e(rdW(1, 1, 0))
    mm(0, 1, 0); A.e(rdW(1, 1, 1)); A.e(rdX(1, 1))
    A.e("s_cmp_ge_u32 s32, 28")
    mm(0, 1, 1)
    if isB:
        A.e("ds_read_b128 v[112:115], v8")
        A.e("ds_read_b64_tr_b16 v[116:117], v9")
        A.e(f"ds_read_b64_tr_b16 v[118:119], v9 offset:{K1_WSLOT}")
    A.e(f"s_cbranch_scc1 {L}_tw")
    A.e(f"s_waitcnt vmcnt({3*D})")
    A.label(f"{L}_back")
    A.e("s_barrier")
    A.e("s_add_u32 s43, s43, 1")
    A.e(f"s_cmp_eq_u32 s43, {K1_NS}")
    A.e(f"s_cselect_b32 s33, s64, {K1_SLOT}")
    A.e("s_cselect_b32 s43, 0, s43")
    A.e(f"s_waitcnt lgkmcnt({3 if isB else 0})")
    mm(1, 0, 0)
    A.e("v_add_u32 v5, s33, v5")
    A.e("v_add_u32 v7, s33, v7")
    A.e(rdX(0, 0)); A.e(rdW(0, 0, 0))
    mm(1, 0, 1)
    A.e(rdW(0, 0, 1)); A.e(rdW(0, 1, 0)); A.e(rdW(0, 1, 1)); A.e(rdX(0, 1))
    A.e(f"s_cmp_ge_u32 s32, {0 if NODMA else 27}")
    mm(1, 1, 0)
    A.e("v_add_u32 v6, s33, v6")
    A.e(f"s_cbranch_scc1 {L}_nodma")
    dma()
    A.label(f"{L}_nodma")
    if isB:
        A.e("s_waitcnt lgkmcnt(6)")
        if T == 2: mfma16(A, 120, 116, 112)
        else: mfma16(A, 120, 112, 116)
        A.e("v_add_u32 v8, s33, v8")
        A.e("v_add_u32 v9, s33, v9")
    A.e("s_add_u32 s32, s32, 1")
    A.e("s_cmp_lt_u32 s32, 32")
    mm(1, 1, 1)
    A.e(f"s_cbranch_scc1 {L}")
    A.check_loop(st, L)
    A.e(f"s_branch {L}_done")
    A.label(f"{L}_tw")
    A.e("s_cmp_eq_u32 s32, 28")
    A.e(f"s_cbranch_scc1 {L}_tw2")
    A.e("s_cmp_eq_u32 s32, 29")
    A.e(f"s_cbranch_scc1 {L}_tw1")
    A.e("s_waitcnt vmcnt(0)")
    A.e(f"s_branch {L}_back")
    A.label(f"{L}_tw2")
    A.e(f"s_waitcnt vmcnt({2*D})")
    A.e(f"s_branch {L}_back")
    A.label(f"{L}_tw1")
    A.e(f"s_waitcnt vmcnt({D})")
    A.e(f"s_branch {L}_back")
    A.label(f"{L}_done")
    A.fence()
    stamp(A, 3)
    A.e("s_nop 15")
    A.e("s_waitcnt lgkmcnt(0)")
    if T == 1: k1_epi_kv(A)
    elif T == 0: k1_epi_eq(A)
    else: k1_epi_q(A, T)
    if DBG:
        stamp(A, 4)
        A.e("s_waitcnt vmcnt(0)")
        stamp(A, 5)
        dbg_dump(A, 6)

def pack16(A, base):
    for i in range(8):
        A.e(f"v_cvt_pk_bf16_f32 v{base+i}, v{base+2*i}, v{base+2*i+1}")

def k1_epi_q(A, T):
    isB = T >= 2
    if isB: A.e("s_sub_u32 s3, s40, 12")
    else: A.e("s_mov_b32 s3, s40")
    A.e("s_lshl_b32 s3, s3, 3")
    A.e("s_add_u32 s3, s3, s39")
    A.e("s_lshl_b32 s3, s3, 17")
    A.e("s_lshl_b32 s36, s35, 13")
    A.e("s_add_u32 s3, s3, s36")
    A.e("s_lshl_b32 s36, s38, 12")
    A.e("s_add_u32 s3, s3, s36")
    if isB: A.e(f"s_add_u32 s3, s3, {WS_QB}")
    A.e(f"s_add_u32 s36, s3, {4*131072}")
    A.e("v_lshlrev_b32 v1, 4, v0")
    for rt in range(2):
        for ct in range(2):
            b = ACC(rt, ct)
            pack16(A, b)
            for t in range(2):
                A.e(f"buffer_store_dwordx4 {vr(b+4*t,4)}, v1, s[24:27], s{36 if ct else 3} offen offset:{rt*2048+t*1024}")
    if isB:
        if T == 2:
            c = f2u(LOG2E / 32 ** 0.5)
            for r in range(120, 124):
                A.e(f"v_mul_f32 v{r}, {c:#x}, v{r}")
        A.e("v_cvt_pk_bf16_f32 v120, v120, v121")
        A.e("v_cvt_pk_bf16_f32 v121, v122, v123")
        A.e("v_bfe_u32 v2, v0, 4, 1")
        A.e("v_lshlrev_b32 v2, 9, v2")
        A.e("v_lshl_add_u32 v2, v10, 4, v2")
        A.e("v_lshrrev_b32 v3, 5, v0")
        A.e("v_lshl_add_u32 v2, v3, 3, v2")
        A.e("s_lshl_b32 s3, s35, 2")
        A.e("s_lshr_b32 s36, s34, 1")
        A.e("s_add_u32 s3, s3, s36")
        A.e("s_lshl_b32 s3, s3, 12")
        A.e(f"s_add_u32 s3, s3, {WS_KV + (2048 if T == 3 else 0)}")
        A.e("s_and_b32 s36, s40, 1")
        A.e("s_and_b32 s37, s34, 1")
        a, b_ = (36, 37) if T == 2 else (37, 36)
        A.e(f"s_lshl_b32 s{a}, s{a}, 10")
        A.e(f"s_lshl_b32 s{b_}, s{b_}, 8")
        A.e("s_add_u32 s3, s3, s36")
        A.e("s_add_u32 s3, s3, s37")
        A.e("buffer_store_dwordx2 v[120:121], v2, s[24:27], s3 offen")


def absmax_check(A, Ps, m, slow):
    regs = [p + i for p in Ps for i in range(16)]
    A.e(f"v_max3_f32 v{m}, |v{regs[0]}|, |v{regs[1]}|, |v{regs[2]}|")
    rest = regs[3:]
    while len(rest) >= 2:
        A.e(f"v_max3_f32 v{m}, v{m}, |v{rest[0]}|, |v{rest[1]}|")
        rest = rest[2:]
    if rest: A.e(f"v_max_f32 v{m}, v{m}, |v{rest[0]}|")
    A.e(f"v_cmp_nle_f32 vcc, v{m}, v{m+1}")
    A.e("s_nop 3")
    A.e("s_cmp_lg_u64 vcc, 0")
    A.e(f"s_cbranch_scc1 {slow}")

def true_shift(A, P, U, t0):
    mx, mn, x, y = t0, t0 + 2, t0 + 4, t0 + 5
    A.e(f"v_max3_f32 v{mx}, v{P}, v{P+1}, v{P+2}")
    A.e(f"v_min3_f32 v{mn}, v{P}, v{P+1}, v{P+2}")
    for i in range(3, 15, 2):
        A.e(f"v_max3_f32 v{mx}, v{mx}, v{P+i}, v{P+i+1}")
        A.e(f"v_min3_f32 v{mn}, v{mn}, v{P+i}, v{P+i+1}")
    A.e(f"v_max_f32 v{mx}, v{mx}, v{P+15}")
    A.e(f"v_min_f32 v{mn}, v{mn}, v{P+15}")
    A.e(f"v_mov_b32 v{x}, v{mx}")
    A.e(f"v_mov_b32 v{y}, v{mn}")
    A.e(f"v_permlane32_swap_b32 v{mx}, v{x}")
    A.e(f"v_permlane32_swap_b32 v{mn}, v{y}")
    A.e(f"v_max_f32 v{mx}, v{mx}, v{x}")
    A.e(f"v_min_f32 v{mn}, v{mn}, v{y}")
    for i in range(16):
        A.e(f"v_sub_f32 v{U+i}, v{P+i}, v{mn}")
        A.e(f"v_sub_f32 v{P+i}, v{P+i}, v{mx}")

def k1_epi_eq(A):
    units = [(rt, ct) for ct in range(2) for rt in range(2)]
    P = {u: 80 + 16 * i for i, u in enumerate(units)}
    U = 172
    A.e(f"v_mov_b32 v9, {f2u(SAFE):#x}")
    A.e("s_lshl_b32 s3, s36, 18")
    A.e("s_lshl_b32 s37, s35, 14")
    A.e("s_add_u32 s3, s3, s37")
    A.e("s_lshl_b32 s37, s38, 13")
    A.e("s_add_u32 s3, s3, s37")
    A.e(f"s_add_u32 s37, s3, {4 << 18}")
    A.e("v_lshlrev_b32 v1, 4, v0")
    A.e("v_add_u32 v2, 4096, v1")
    for u in units:
        rt, ct = u
        pack16(A, ACC(rt, ct))
        mfma32(A, P[u], WPK + 8 * ct, ACC(rt, ct), "0")
        mfma32(A, P[u], WPK + 8 * ct + 4, ACC(rt, ct) + 4)
    absmax_check(A, [P[u] for u in units], 8, "K1_eq_slow")
    def tail(u, src):
        rt, ct = u
        p = P[u]
        for half in range(2):
            for i in range(8 * half, 8 * half + 8):
                A.e(f"v_exp_f32 v{U+i}, -v{src+i}")
            for i in range(8 * half, 8 * half + 8):
                A.e(f"v_exp_f32 v{p+i}, v{p+i}")
            o = ACC(rt, ct) + 8 * half
            for i in range(4):
                A.e(f"v_cvt_pk_bf16_f32 v{o+4+i}, v{U+8*half+2*i}, v{U+8*half+2*i+1}")
            for i in range(4):
                A.e(f"v_cvt_pk_bf16_f32 v{o+i}, v{p+8*half+2*i}, v{p+8*half+2*i+1}")
            A.e(f"buffer_store_dwordx4 {vr(o+4,4)}, v{1+rt}, s[24:27], s{37 if ct else 3} offen offset:{2048 + half*1024}")
            A.e(f"buffer_store_dwordx4 {vr(o,4)}, v{1+rt}, s[24:27], s{37 if ct else 3} offen offset:{half*1024}")
    for u in units: tail(u, P[u])
    if DBG:
        stamp(A, 4)
        A.e("s_waitcnt vmcnt(0)")
        stamp(A, 5)
        dbg_dump(A, 6)
    A.e("s_endpgm")
    A.label("K1_eq_slow")
    A.fence()
    for u in units:
        true_shift(A, P[u], U, 2 + 8)
        tail_slow = tail
        tail(u, U)

PHI_BASE = 2 * K1_SLOT
PHI_PITCH = 136
PHI_WAVE = 64 * PHI_PITCH
XB_BASE = PHI_BASE + 8 * PHI_WAVE

def k1_epi_kv(A):
    Pr = [124, 140]
    Ur = [80, 96]
    KV = [156, 172]
    ZS = [112, 116]
    SEL = 120
    A.e(f"v_mov_b32 v9, {f2u(SAFE):#x}")
    for rt in range(2):
        pack16(A, ACC(rt, 0))
        mfma32(A, Pr[rt], WPK, ACC(rt, 0), "0")
        mfma32(A, Pr[rt], WPK + 4, ACC(rt, 0) + 4)
    for rt in range(2):
        pack16(A, ACC(rt, 1))
    A.e(f"s_mul_i32 s3, s34, {PHI_WAVE}")
    A.e(f"s_add_u32 s3, s3, {PHI_BASE}")
    A.e("v_and_b32 v1, 31, v0")
    A.e(f"v_mul_u32_u24 v1, {PHI_PITCH}, v1")
    A.e("v_lshl_add_u32 v1, v13, 3, v1")
    A.e("v_add_u32 v1, s3, v1")
    A.e("v_lshl_add_u32 v2, v13, 2, v12")
    A.e(f"v_mul_u32_u24 v2, {PHI_PITCH}, v2")
    A.e("v_bfe_u32 v3, v0, 4, 1")
    A.e("v_lshl_add_u32 v2, v3, 5, v2")
    A.e("v_lshl_add_u32 v2, v14, 3, v2")
    A.e("v_add_u32 v2, s3, v2")
    A.e("v_lshrrev_b32 v3, 2, v0")
    A.e("v_xor_b32 v3, v3, v0")
    A.e("v_and_b32 v3, 4, v3")
    A.e("v_or_b32 v3, v3, v14")
    A.e("v_cmp_eq_u32 vcc, 0, v3")
    A.e("v_mov_b32 v4, 0x3f803f80")
    A.e("v_mov_b32 v5, 0")
    for i in range(4):
        A.e(f"v_cndmask_b32 v{SEL+i}, v5, v4, vcc")
    absmax_check(A, Pr, 8, "K1_kv_slow")
    def exps(rt, src):
        P, U = Pr[rt], Ur[rt]
        for i in range(16):
            A.e(f"v_exp_f32 v{U+i}, -v{src+i}")
            A.e(f"v_exp_f32 v{P+i}, v{P+i}")
    for rt in range(2): exps(rt, Pr[rt])
    A.label("K1_kv_common")
    A.e("s_nop 0")
    sp = [4, 10]; sn = [6, 14+2]
    sp = [4, 8]; sn = [6, 10]
    for rt in range(2):
        P, U = Pr[rt], Ur[rt]
        A.e(f"v_pk_add_f32 {vr(sp[rt],2)}, {vr(P,2)}, {vr(P+2,2)}")
        A.e(f"v_pk_add_f32 {vr(sn[rt],2)}, {vr(U,2)}, {vr(U+2,2)}")
        for i in range(4, 16, 2):
            A.e(f"v_pk_add_f32 {vr(sp[rt],2)}, {vr(sp[rt],2)}, {vr(P+i,2)}")
            A.e(f"v_pk_add_f32 {vr(sn[rt],2)}, {vr(sn[rt],2)}, {vr(U+i,2)}")
    for rt in range(2):
        A.e(f"v_add_f32 v{sp[rt]}, v{sp[rt]}, v{sp[rt]+1}")
        A.e(f"v_add_f32 v{sn[rt]}, v{sn[rt]}, v{sn[rt]+1}")
    for rt in range(2):
        A.e(f"v_permlane32_swap_b32 v{sp[rt]}, v{sn[rt]}")
    for rt in range(2):
        A.e(f"v_add_f32 v{sp[rt]}, v{sp[rt]}, v{sn[rt]}")
    for rt in range(2):
        A.e(f"v_rcp_f32 v{sp[rt]}, v{sp[rt]}")
    for rt in range(2):
        A.e(f"v_mov_b32 v{sn[rt]}, v{sp[rt]}")
    for rt in range(2):
        A.e(f"v_permlane32_swap_b32 v{sp[rt]}, v{sn[rt]}")
    for rt in range(2):
        P, U = Pr[rt], Ur[rt]
        for q in range(4):
            for i in (4 * q, 4 * q + 2):
                A.e(f"v_pk_mul_f32 {vr(P+i,2)}, {vr(P+i,2)}, {vr(sp[rt],2)} op_sel_hi:[1,0]")
                A.e(f"v_pk_mul_f32 {vr(U+i,2)}, {vr(U+i,2)}, {vr(sn[rt],2)} op_sel_hi:[1,0]")
            for i in (4 * q, 4 * q + 2):
                A.e(f"v_cvt_pk_bf16_f32 v{P+i//2}, v{P+i}, v{P+i+1}")
                A.e(f"v_cvt_pk_bf16_f32 v{U+i//2}, v{U+i}, v{U+i+1}")
            A.e(f"ds_write_b64 v1, {vr(P+2*q,2)} offset:{rt*32*PHI_PITCH + q*16}")
            A.e(f"ds_write_b64 v1, {vr(U+2*q,2)} offset:{rt*32*PHI_PITCH + 64 + q*16}")
    A.e("s_waitcnt lgkmcnt(0)")
    F = lambda ft, rt, t: 80 + ((ft * 2 + rt) * 2 + t) * 4
    for ft in range(2):
        for rt in range(2):
            for t in range(2):
                off = (rt * 32 + 16 * t) * PHI_PITCH + ft * 64
                A.e(f"ds_read_b64_tr_b16 {vr(F(ft,rt,t),2)}, v2 offset:{off}")
                A.e(f"ds_read_b64_tr_b16 {vr(F(ft,rt,t)+2,2)}, v2 offset:{off + 8*PHI_PITCH}")
    A.e("s_lshl_b32 s37, s36, 5")
    A.e("s_lshl_b32 s3, s35, 1")
    A.e("s_add_u32 s37, s37, s3")
    A.e("s_add_u32 s37, s37, s38")
    A.e("s_lshl_b32 s37, s37, 8")
    A.e(f"s_add_u32 s37, s37, {WS_ZP}")
    A.e("v_lshlrev_b32 v6, 2, v0")
    A.e("v_lshlrev_b32 v1, 4, v0")
    A.e("s_lshl_b32 s3, s39, 13")
    A.e(f"s_add_u32 s3, s3, {XB_BASE}")
    A.e("v_add_u32 v2, s3, v1")
    A.e("s_lshl_b32 s3, s36, 4")
    A.e("s_add_u32 s3, s3, s35")
    A.e("s_lshl_b32 s3, s3, 1")
    A.e("s_add_u32 s3, s3, s38")
    A.e("s_lshl_b32 s3, s3, 12")
    A.e(f"s_add_u32 s3, s3, {WS_KVP}")
    A.e("s_mov_b32 vcc_lo, 0")
    A.e("s_mov_b32 vcc_hi, -1")
    n = 0
    for ft in range(2):
        for rt in range(2):
            for t in range(2):
                n += 1
                A.e(f"s_waitcnt lgkmcnt({16 - 2*n})")
                first = "0" if (rt == 0 and t == 0) else None
                mfma32(A, KV[ft], F(ft, rt, t), ACC(rt, 1) + 4 * t, first)
                mfma16(A, ZS[ft], SEL, F(ft, rt, t), first)
    A.e(f"v_cndmask_b32 v4, v{ZS[0]}, v{ZS[1]}, vcc")
    A.e("buffer_store_dword v4, v6, s[24:27], s37 offen")
    A.e("s_cmp_eq_u32 s38, 0")
    A.e("s_nop 7")
    A.e("s_cbranch_scc0 K1_kv_wm1")
    hist = list(A.hist)
    for wm in range(2):
        if wm == 1:
            A.label("K1_kv_wm1")
            A.hist = list(hist)
        keep, send = KV[wm], KV[1 - wm]
        for rq in range(4):
            A.e(f"ds_write_b128 v2, {vr(send+4*rq,4)} offset:{(1-wm)*4096 + rq*1024}")
        A.e("s_waitcnt lgkmcnt(0)")
        A.e("s_barrier")
        for rq in range(4):
            A.e(f"ds_read_b128 {vr(80+4*rq,4)}, v2 offset:{wm*4096 + rq*1024}")
        for rq in range(4):
            A.e(f"s_waitcnt lgkmcnt({3-rq})")
            A.e(f"v_pk_add_f32 {vr(keep+4*rq,2)}, {vr(keep+4*rq,2)}, {vr(80+4*rq,2)}")
            A.e(f"v_pk_add_f32 {vr(keep+4*rq+2,2)}, {vr(keep+4*rq+2,2)}, {vr(80+4*rq+2,2)}")
            A.e(f"buffer_store_dwordx4 {vr(keep+4*rq,4)}, v1, s[24:27], s3 offen offset:{rq*1024}")
        if DBG:
            stamp(A, 4)
            A.e("s_waitcnt vmcnt(0)")
            stamp(A, 5)
            dbg_dump(A, 6)
        A.e("s_endpgm")
    A.label("K1_kv_slow")
    A.fence()
    for rt in range(2):
        true_shift(A, Pr[rt], Ur[rt], 4)
        exps(rt, Ur[rt])
    A.e("s_branch K1_kv_common")
```

```python
from asmlib import *
from gen_k1 import *
import os

K2_CH = 32768
K2_NB = 4
K2_KVS = K2_CH * K2_NB
K2_ZS = K2_KVS + 4096
K2_LDS = K2_ZS + 256
K2_VGPR = 212

Q = 8
KF = 16
VF = 24
SB = [32, 48]
CM = 64
PF = 80
OA_ = 88
LS = 104
SEL = 108
RL = 112
EQ = RL
KACC = 128
ZP = 132
KT = 136
ZF = 152
NUM = [168, 184]
LD = [200, 204]
T0 = 208
PFD = 207
WPF = int(os.environ.get("WPF", "1"))

def gen_k2(A, name):
    KIDX[0] = 1
    kernel_header(A, name)
    A.e("s_cmp_ge_u32 s2, 256")
    A.e("s_cbranch_scc1 K2_end")
    stamp(A, 0)
    if DBG: A.e("s_memrealtime s[84:85]")
    A.e("s_load_dwordx2 s[60:61], s[0:1], 88")
    if WPF:
        A.e("s_load_dwordx2 s[44:45], s[0:1], 24")
        A.e("s_load_dwordx2 s[46:47], s[0:1], 64")
    A.e("v_lshrrev_b32 v1, 6, v0")
    A.e("v_and_b32 v0, 63, v0")
    A.e("v_readfirstlane_b32 s34, v1")
    A.e("s_and_b32 s3, s2, 7")
    A.e("s_lshr_b32 s36, s2, 3")
    A.e("s_lshl_b32 s35, s3, 2")
    A.e("s_lshr_b32 s37, s36, 3")
    A.e("s_add_u32 s35, s35, s37")
    A.e("s_and_b32 s36, s36, 7")
    A.e("s_lshl_b32 s36, s36, 3")
    A.e("v_lshlrev_b32 v1, 4, v0")
    A.e("s_add_u32 s36, s36, s34")
    A.e("s_lshl_b32 s31, s34, 12")
    A.e(f"s_add_u32 s28, s31, {WS_KV}")
    A.e("s_lshl_b32 s38, s35, 17")
    A.e("s_lshl_b32 s39, s36, 11")
    A.e("s_add_u32 s38, s38, s39")
    A.e(f"s_add_u32 s39, s38, {WS_QB}")
    A.e("s_lshl_b32 s38, s38, 1")
    A.e("s_mov_b32 s26, %d" % WS_BYTES)
    A.e("s_mov_b32 s27, 0x00020000")
    A.e("s_mov_b32 m0, s31")
    A.e("s_waitcnt lgkmcnt(0)")
    A.e("s_mov_b32 s24, s60")
    A.e("s_and_b32 s25, s61, 0xffff")
    def dma1(i):
        A.e(f"buffer_load_dwordx4 v1, s[24:27], s28 offen offset:{i*1024} lds")
    def dma_next():
        A.e(f"s_add_u32 s31, s31, {K2_CH}")
        A.e(f"s_add_u32 s28, s28, {K2_CH}")
        A.e(f"s_and_b32 s31, s31, {K2_CH*K2_NB - 1}")
        A.e("s_mov_b32 m0, s31")
    for i in range(4): dma1(i)
    A.e(f"buffer_load_dwordx4 {vr(Q,4)}, v1, s[24:27], s39 offen")
    A.e(f"buffer_load_dwordx4 {vr(Q+4,4)}, v1, s[24:27], s39 offen offset:1024")
    for c in range(2):
        dma_next()
        for i in range(4): dma1(i)
    A.e("s_lshl_b32 s37, s34, 10")
    A.e("s_lshl_b32 s3, s35, 13")
    A.e("s_add_u32 s3, s3, s37")
    A.e(f"s_add_u32 s3, s3, {WS_ZP}")
    A.e(f"buffer_load_dwordx4 {vr(ZP,4)}, v1, s[24:27], s3 offen")
    A.e("s_lshl_b32 s68, s35, 17")
    A.e("s_add_u32 s68, s68, s37")
    A.e(f"s_add_u32 s68, s68, {WS_KVP}")
    A.e("s_movk_i32 s69, 8192")
    A.e("v_lshlrev_b32 v2, 2, v0")
    stamp(A, 1)
    A.e("v_lshrrev_b32 v7, 5, v0")
    A.e("v_mov_b32 v3, 0")
    A.e(f"v_add_u32 v6, {K2_ZS}, v2")
    A.e("ds_write_b32 v6, v3")
    A.e("v_lshrrev_b32 v3, 2, v0")
    A.e("v_xor_b32 v3, v3, v0")
    A.e("v_and_b32 v3, 4, v3")
    A.e("v_and_b32 v4, 3, v0")
    A.e("v_or_b32 v3, v3, v4")
    A.e("v_cmp_eq_u32 vcc, 0, v3")
    A.e("v_cmp_eq_u32 s[66:67], 1, v3")
    A.e("v_mov_b32 v4, 0x3f803f80")
    A.e("v_mov_b32 v5, 0")
    for i in range(4):
        A.e(f"v_cndmask_b32 v{SEL+i}, v5, v4, vcc")
    for i in range(16):
        A.e(f"v_mov_b32 v{OA_+i}, 0")
        A.e(f"v_mov_b32 v{RL+i}, 0")
    for i in range(4):
        A.e(f"v_mov_b32 v{LS+i}, 0")
        A.e(f"v_mov_b32 v{PF+4+i}, 0")
        A.e(f"v_mov_b32 v{VF+4+i}, 0")
        A.e(f"v_mov_b32 v{KACC+i}, 0")
    A.e("v_and_b32 v6, 15, v0")
    A.e("v_lshlrev_b32 v6, 4, v6")
    A.e(f"v_add_u32 v6, {K2_ZS}, v6")
    if WPF:
        A.e("s_cmp_lt_u32 s2, 128")
        A.e("s_cselect_b32 s44, s44, s46")
        A.e("s_cselect_b32 s45, s45, s47")
        srd(A, 48, 44, 2097152)
        A.e("s_and_b32 s3, s2, 127")
        A.e("s_lshl_b32 s3, s3, 14")
        A.e("s_lshl_b32 s37, s34, 11")
        A.e("s_add_u32 s52, s3, s37")
    A.e("s_mov_b32 s32, 0")
    A.e("s_lshr_b32 s3, s34, 1")
    A.e("s_lshl_b32 s3, s3, 10")
    A.e("s_and_b32 s37, s34, 1")
    A.e("s_lshl_b32 s37, s37, 3")
    A.e("s_add_u32 s3, s3, s37")
    A.e(f"s_add_u32 s53, s3, {K2_KVS}")
    A.e("s_lshl_b32 s40, s36, 16")
    A.e("s_lshl_b32 s3, s35, 11")
    A.e("s_add_u32 s40, s40, s3")
    A.e(f"s_add_u32 s41, s40, {WS_OB}")
    A.e(f"s_add_u32 s40, s40, {WS_OA}")
    A.e("v_mov_b32 v5, v1")
    A.e(f"v_add_u32 v4, {K2_CH}, v1")
    A.e("s_waitcnt vmcnt(9) lgkmcnt(0)")
    A.e("s_barrier")
    stamp(A, 2)
    A.e(f"ds_read_b128 {vr(KF,4)}, v5")
    A.e(f"ds_read_b128 {vr(KF+4,4)}, v5 offset:1024")
    A.e(f"ds_read_b128 {vr(VF,4)}, v5 offset:2048")
    A.e("s_waitcnt lgkmcnt(2)")
    mfma32(A, SB[0], KF, Q, "0")
    A.e("s_waitcnt lgkmcnt(1)")
    mfma32(A, SB[0], KF + 4, Q + 4)
    A.e(f"ds_read_b128 {vr(KF,4)}, v5 offset:4096")
    A.e(f"ds_read_b128 {vr(KF+4,4)}, v5 offset:{4096+1024}")
    S = SB[0]
    A.e(f"v_max3_f32 v{T0}, v{S}, v{S+1}, v{S+2}")
    for i in range(3, 15, 2):
        A.e(f"v_max3_f32 v{T0}, v{T0}, v{S+i}, v{S+i+1}")
    A.e(f"v_max_f32 v{T0}, v{T0}, v{S+15}")
    A.e(f"v_mov_b32 v{T0+1}, v{T0}")
    A.e(f"v_permlane32_swap_b32 v{T0}, v{T0+1}")
    A.e(f"v_max_f32 v{T0}, v{T0}, v{T0+1}")
    A.e(f"v_sub_f32 v{CM}, 0, v{T0}")
    for i in range(1, 16):
        A.e(f"v_mov_b32 v{CM+i}, v{CM}")
    for i in range(0, 16, 2):
        A.e(f"v_pk_add_f32 {vr(S+i,2)}, {vr(S+i,2)}, {vr(CM,2)}")
    A.e("s_waitcnt lgkmcnt(0)")

    A.raw(".p2align 6")
    A.label("K2_chunk")
    st = A.mark()
    A.e("s_cmp_eq_u32 s32, 0")
    A.e("s_cbranch_scc1 K2_wA")
    A.e("s_cmp_ge_u32 s32, 6")
    A.e("s_cbranch_scc1 K2_wB")
    A.e("s_waitcnt vmcnt(8)")
    A.e("s_barrier")
    A.e("s_cmp_eq_u32 s32, 5")
    A.e("s_cbranch_scc1 K2_blkL")
    A.e("s_cmp_eq_u32 s32, 4")
    A.e("s_cselect_b64 vcc, -1, 0")
    A.e("s_cselect_b32 s68, s38, s68")
    A.e("s_cselect_b32 s69, 1024, s69")
    A.label("K2_go")
    dma_next()
    A.e("s_cmp_ge_u32 s32, 5")
    for j in range(8):
        k2_tile(A, j, dma1)
    A.e("v_mov_b32 v5, v4")
    A.e(f"v_add_u32 v4, {K2_CH}, v4")
    A.e(f"v_and_b32 v4, {K2_CH*K2_NB - 1}, v4")
    A.e("s_add_u32 s32, s32, 1")
    A.e("s_cmp_lt_u32 s32, 8")
    A.e("s_cbranch_scc1 K2_chunk")
    A.check_loop(st, "K2")
    mfma32(A, OA_, VF + 4, PF + 4)
    mfma16(A, LS, SEL, PF + 4)
    stamp(A, 3)
    A.e(f"v_mov_b32 v3, {f2u(2.0**60):#x}")
    A.e(f"v_cmp_nlt_f32 vcc, v{LS}, v3")
    A.e(f"v_rcp_f32 v{T0}, v{LS}")
    A.e("s_nop 3")
    A.e("s_cmp_eq_u64 vcc, 0")
    A.e("s_cbranch_scc0 K2_fallback")
    A.label("K2_fin")
    for t in range(2):
        for i in range(8 * t, 8 * t + 8, 2):
            A.e(f"v_pk_mul_f32 {vr(OA_+i,2)}, {vr(OA_+i,2)}, {vr(T0,2)} op_sel_hi:[1,0]")
        for i in range(8 * t, 8 * t + 8, 2):
            A.e(f"v_cvt_pk_bf16_f32 v{OA_+i//2}, v{OA_+i}, v{OA_+i+1}")
        A.e(f"buffer_store_dwordx4 {vr(OA_+4*t,4)}, v1, s[24:27], s41 offen offset:{1024*t}")
    if DBG:
        stamp(A, 4)
        A.e("s_waitcnt vmcnt(0)")
        stamp(A, 5)
        dbg_dump(A, 6)
    A.e("s_endpgm")

    A.label("K2_wA")
    A.fence()
    A.e("s_waitcnt vmcnt(5)")
    A.e("s_barrier")
    A.e("s_mov_b64 vcc, 0")
    A.e("s_branch K2_go")
    A.label("K2_wB")
    A.e("s_cmp_eq_u32 s32, 7")
    A.e("s_cbranch_scc1 K2_blkF")
    A.e("s_waitcnt vmcnt(0)")
    A.e("s_barrier")
    A.e("s_branch K2_blkZ")
    A.label("K2_blkR")
    A.fence()
    A.e(f"v_cvt_pk_bf16_f32 v{KACC}, v{KACC}, v{KACC+1}")
    A.e(f"v_cvt_pk_bf16_f32 v{KACC+1}, v{KACC+2}, v{KACC+3}")
    A.e("v_add_u32 v3, s53, v1")
    A.e(f"ds_write_b64 v3, {vr(KACC,2)}")
    for i in range(4):
        A.e(f"ds_add_f32 v6, v{ZP+i} offset:{4*i}")
    A.e("s_branch K2_retR")
    A.label("K2_blkL")
    A.fence()
    A.e(f"v_add_u32 v3, {K2_KVS}, v1")
    for i in range(4):
        A.e(f"ds_read_b128 {vr(KT+4*i,4)}, v3 offset:{i*1024}")
    A.e("v_lshlrev_b32 v3, 4, v7")
    A.e(f"v_add_u32 v3, {K2_ZS}, v3")
    for i in range(8):
        A.e(f"ds_read_b128 {vr(ZF+4*i,4)}, v3 offset:{i*32}")
    if WPF:
        A.e("v_lshlrev_b32 v3, 5, v0")
        A.e(f"buffer_load_dword v{PFD}, v3, s[48:51], s52 offen")
    A.e("s_branch K2_go")
    A.label("K2_blkZ")
    A.fence()
    for i in range(16):
        A.e(f"v_cvt_pk_bf16_f32 v{ZF+i}, v{ZF+2*i}, v{ZF+2*i+1}")
    for ft in range(2):
        for t in range(2):
            i = ft * 2 + t
            mfma32(A, NUM[ft], KT + 4 * i, EQ + 4 * i, "0" if t == 0 else None)
            for r in range(4):
                A.e(f"v_cndmask_b32 v{ZF+4*i+r}, v{SEL}, v{ZF+4*i+r}, s[66:67]")
    for ft in range(2):
        for t in range(2):
            i = ft * 2 + t
            mfma16(A, LD[ft], ZF + 4 * i, EQ + 4 * i, "0" if t == 0 else None)
    A.e("s_branch K2_go")
    A.label("K2_blkF")
    A.fence()
    a, b = LD[0], LD[1]
    A.e(f"v_rcp_f32 v{a}, v{a}")
    A.e(f"v_rcp_f32 v{b}, v{b}")
    A.e(f"v_mov_b32 v{T0}, {f2u(1e-6):#x}")
    A.e(f"v_fmac_f32 v{T0}, v{a}, v{a+1}")
    A.e(f"v_fmac_f32 v{T0}, v{b}, v{b+1}")
    A.e(f"v_rcp_f32 v{T0}, v{T0}")
    A.e(f"v_mul_f32 v{a}, v{a}, v{T0}")
    A.e(f"v_mul_f32 v{b}, v{b}, v{T0}")
    for t in range(2):
        for i in range(8 * t, 8 * t + 8, 2):
            A.e(f"v_pk_mul_f32 {vr(NUM[0]+i,2)}, {vr(NUM[0]+i,2)}, {vr(a,2)} op_sel_hi:[1,0]")
        for i in range(8 * t, 8 * t + 8, 2):
            A.e(f"v_pk_fma_f32 {vr(NUM[0]+i,2)}, {vr(NUM[1]+i,2)}, {vr(b,2)}, {vr(NUM[0]+i,2)} op_sel_hi:[1,0,1]")
        for i in range(8 * t, 8 * t + 8, 2):
            A.e(f"v_cvt_pk_bf16_f32 v{NUM[0]+i//2}, v{NUM[0]+i}, v{NUM[0]+i+1}")
        A.e(f"buffer_store_dwordx4 {vr(NUM[0]+4*t,4)}, v1, s[24:27], s40 offen offset:{1024*t}")
    A.e("s_branch K2_go")

    A.label("K2_fallback")
    A.fence()
    A.e("s_waitcnt vmcnt(0) lgkmcnt(0)")
    A.e(f"s_mov_b32 s28, {WS_KV}")
    A.e(f"v_mov_b32 v{T0}, 0xff800000")
    A.label("K2_fb1")
    st = A.mark()
    A.e(f"buffer_load_dwordx4 {vr(KF,4)}, v1, s[24:27], s28 offen")
    A.e(f"buffer_load_dwordx4 {vr(KF+4,4)}, v1, s[24:27], s28 offen offset:1024")
    A.e("s_add_u32 s28, s28, 4096")
    A.e("s_waitcnt vmcnt(0)")
    mfma32(A, SB[0], KF, Q, "0")
    mfma32(A, SB[0], KF + 4, Q + 4)
    for i in range(0, 16, 2):
        A.e(f"v_max3_f32 v{T0}, v{T0}, v{SB[0]+i}, v{SB[0]+i+1}")
    A.e(f"s_cmp_lt_u32 s28, {WS_KV + 262144}")
    A.e("s_cbranch_scc1 K2_fb1")
    A.check_loop(st, "fb1")
    A.e(f"v_mov_b32 v{T0+1}, v{T0}")
    A.e(f"v_permlane32_swap_b32 v{T0}, v{T0+1}")
    A.e(f"v_max_f32 v{T0}, v{T0}, v{T0+1}")
    for i in range(16):
        A.e(f"v_sub_f32 v{CM+i}, 0, v{T0}")
        A.e(f"v_mov_b32 v{OA_+i}, 0")
    for i in range(4):
        A.e(f"v_mov_b32 v{LS+i}, 0")
    A.e(f"s_mov_b32 s28, {WS_KV}")
    A.label("K2_fb2")
    st = A.mark()
    for i in range(4):
        A.e(f"buffer_load_dwordx4 {vr(KF+4*i,4)}, v1, s[24:27], s28 offen offset:{i*1024}")
    A.e("s_add_u32 s28, s28, 4096")
    A.e("s_waitcnt vmcnt(0)")
    mfma32(A, SB[0], KF, Q, CM)
    mfma32(A, SB[0], KF + 4, Q + 4)
    for i in range(16):
        A.e(f"v_exp_f32 v{SB[0]+i}, v{SB[0]+i}")
    for i in range(8):
        A.e(f"v_cvt_pk_bf16_f32 v{PF+i}, v{SB[0]+2*i}, v{SB[0]+2*i+1}")
    mfma32(A, OA_, VF, PF)
    mfma32(A, OA_, VF + 4, PF + 4)
    mfma16(A, LS, SEL, PF)
    mfma16(A, LS, SEL, PF + 4)
    A.e(f"s_cmp_lt_u32 s28, {WS_KV + 262144}")
    A.e("s_nop 7")
    A.e("s_cbranch_scc1 K2_fb2")
    A.check_loop(st, "fb2")
    A.e("s_nop 15")
    A.e(f"v_rcp_f32 v{T0}, v{LS}")
    A.e("s_nop 1")
    A.e("s_branch K2_fin")
    A.label("K2_end")
    A.e("s_endpgm")

def k2_tile(A, j, dma1):
    S, N = SB[j & 1], SB[(j + 1) & 1]
    def ex(a, b):
        for i in range(a, b): A.e(f"v_exp_f32 v{S+i}, v{S+i}")
    def cv(a, b):
        for i in range(a, b): A.e(f"v_cvt_pk_bf16_f32 v{PF+i}, v{S+2*i}, v{S+2*i+1}")
    def rd(reg, t, off):
        r, o = ("v5", t * 4096) if t < 8 else ("v4", (t - 8) * 4096)
        A.e(f"ds_read_b128 {vr(reg,4)}, {r} offset:{o+off}")
    mfma32(A, N, KF, Q, CM); rd(KF, j + 2, 0); ex(0, 4)
    mfma32(A, OA_, VF + 4, PF + 4); rd(VF + 4, j, 3072); ex(4, 8)
    mfma32(A, N, KF + 4, Q + 4); rd(KF + 4, j + 2, 1024); cv(0, 4); ex(8, 10)
    mfma16(A, LS, SEL, PF + 4); A.e("s_waitcnt lgkmcnt(3)")
    ex(10, 12)
    mfma32(A, OA_, VF, PF); rd(VF, j + 1, 2048)
    L = A.newlabel("K2_nd")
    A.e(f"s_cbranch_scc1 {L}")
    if j < 4:
        A.e("s_waitcnt vmcnt(7)")
        A.e(f"v_pk_add_f32 {vr(KACC,2)}, {vr(KACC,2)}, {vr(RL+4*j,2)}")
        A.e(f"v_pk_add_f32 {vr(KACC+2,2)}, {vr(KACC+2,2)}, {vr(RL+4*j+2,2)}")
        A.e(f"buffer_load_dwordx4 {vr(RL+4*j,4)}, v1, s[24:27], s68 offen")
        A.e("s_add_u32 s68, s68, s69")
    else:
        dma1(j - 4)
        if j == 4:
            A.e("s_cbranch_vccnz K2_blkR")
            A.label("K2_retR")
    A.label(L)
    ex(12, 16)
    mfma16(A, LS, SEL, PF); A.e("s_waitcnt lgkmcnt(1)")
    cv(4, 8)
```

```python
from asmlib import *
import struct

WS_EQ = 0; WS_QB = 8 << 20; WS_KV = 12 << 20; WS_KVP = 13 << 20; WS_ZP = 17 << 20
WS_OA = 18 << 20; WS_OB = 22 << 20; WS_BYTES = 26 << 20
SAFE = 60.0
LOG2E = 1.4426950408889634
def f2u(x): return struct.unpack("<I", struct.pack("<f", x))[0]

K1_WSLOT = 3328
K1_SLOT = 8 * K1_WSLOT
K1_NS = 6
K1_LDS = K1_SLOT * K1_NS
K1_VGPR = 192

import os
DBG = int(os.environ.get("K1DBG", "0"))
TL = int(os.environ.get("TL", "0"))
KIDX = [0]
NODMA = int(os.environ.get("NODMA", "0"))
NOMFMA = int(os.environ.get("NOMFMA", "0"))
NOLDS = int(os.environ.get("NOLDS", "0"))
def stamp(A, i):
    if DBG:
        A.e(f"s_memtime s[{70+2*i}:{71+2*i}]")
def dbg_dump(A, n):
    if not DBG: return
    if TL:
        k = KIDX[0]
        A.e("s_memrealtime s[86:87]")
        A.e("s_load_dwordx2 s[88:89], s[0:1], 80")
        A.e("s_waitcnt lgkmcnt(0)")
        srd(A, 92, 88, 256, -512 * k)
        A.e("s_not_b32 s84, s84")
        A.e("v_mov_b32 v1, 0")
        A.e("v_mov_b32 v2, s84")
        A.e("v_mov_b32 v3, s86")
        A.e("s_mov_b64 exec, 1")
        A.e(f"buffer_atomic_umax v2, v1, s[92:95], 0 offen offset:{16*k}")
        A.e(f"buffer_atomic_umax v3, v1, s[92:95], 0 offen offset:{16*k+4}")
        L = A.newlabel("dbgskip")
        A.e("s_cmp_lg_u32 s2, 0")
        A.e(f"s_cbranch_scc1 {L}")
        A.e("s_cmp_lg_u32 s34, 0")
        A.e(f"s_cbranch_scc1 {L}")
        A.e("s_sub_u32 s80, s80, s70")
        A.e("v_mov_b32 v2, s80")
        A.e(f"buffer_store_dword v2, v1, s[92:95], 0 offen offset:{16*k+8}")
        A.e(f"buffer_store_dword v3, v1, s[92:95], 0 offen offset:{16*k+12}")
        A.label(L)
        return
    L = A.newlabel("dbgskip")
    A.e("s_memrealtime s[86:87]")
    A.e("s_waitcnt lgkmcnt(0)")
    A.e("s_lshr_b32 s3, s2, 3")
    A.e(f"s_cmp_lg_u32 s3, {DBG-1}")
    A.e(f"s_cbranch_scc1 {L}")
    A.e("s_cmp_lg_u32 s34, 0")
    A.e(f"s_cbranch_scc1 {L}")
    A.e("s_load_dwordx2 s[88:89], s[0:1], 80")
    A.e("s_waitcnt lgkmcnt(0)")
    srd(A, 92, 88, 256)
    A.e("s_and_b32 s3, s2, 7")
    A.e("s_lshl_b32 s3, s3, 5")
    A.e("v_mov_b32 v1, 0")
    for i in range(1, n):
        A.e(f"s_sub_u32 s{70+2*i}, s{70+2*i}, s70")
        A.e(f"v_mov_b32 v2, s{70+2*i}")
        A.e(f"buffer_store_dword v2, v1, s[92:95], s3 offen offset:{4*i}")
    A.e("s_sub_u32 s86, s86, s84")
    A.e("v_mov_b32 v2, s86")
    A.e(f"buffer_store_dword v2, v1, s[92:95], s3 offen offset:28")
    A.label(L)

def gen_k1(A, name):
    KIDX[0] = 0
    kernel_header(A, name)
    Lend = "K1_end"
    A.e("s_cmp_ge_u32 s2, 256")
    A.e(f"s_cbranch_scc1 {Lend}")
    stamp(A, 0)
    if DBG: A.e("s_memrealtime s[84:85]")
    A.e("s_load_dwordx16 s[44:59], s[0:1], 0")
    A.e("s_load_dwordx2 s[60:61], s[0:1], 88")
    A.e("v_lshrrev_b32 v1, 6, v0")
    A.e("v_and_b32 v0, 63, v0")
    A.e("v_readfirstlane_b32 s34, v1")
    A.e("s_and_b32 s3, s2, 7")
    A.e("s_lshr_b32 s36, s2, 3")
    A.e("s_and_b32 s35, s3, 1")
    A.e("s_lshl_b32 s35, s35, 3")
    A.e("s_and_b32 s37, s36, 7")
    A.e("s_add_u32 s35, s35, s37")
    A.e("s_lshr_b32 s40, s3, 1")
    A.e("s_lshl_b32 s40, s40, 2")
    A.e("s_lshr_b32 s37, s36, 3")
    A.e("s_add_u32 s40, s40, s37")
    A.e("s_lshr_b32 s38, s34, 2")
    A.e("s_and_b32 s39, s34, 3")
    A.e("v_and_b32 v10, 15, v0")
    A.e("v_lshlrev_b32 v5, 6, v10")
    A.e("v_bfe_u32 v11, v0, 4, 1")
    A.e(f"v_mul_u32_u24 v11, {K1_WSLOT}, v11")
    A.e("v_add_u32 v5, v5, v11")
    A.e(f"s_mul_i32 s3, s38, {4*K1_WSLOT}")
    A.e("v_add_u32 v5, s3, v5")
    A.e("v_bfe_u32 v12, v0, 2, 2")
    A.e("v_lshrrev_b32 v13, 5, v0")
    A.e("v_xor_b32 v14, v13, v12")
    A.e("v_xor_b32 v15, 2, v14")
    A.e("v_lshl_add_u32 v6, v15, 4, v5")
    A.e("v_lshl_add_u32 v5, v14, 4, v5")
    A.e(f"v_mul_u32_u24 v7, {2*K1_WSLOT}, v13")
    A.e("v_lshl_add_u32 v7, v12, 6, v7")
    A.e("v_bfe_u32 v11, v0, 4, 1")
    A.e("v_lshl_add_u32 v7, v11, 5, v7")
    A.e("v_and_b32 v14, 3, v0")
    A.e("v_lshl_add_u32 v7, v14, 3, v7")
    A.e("s_lshl_b32 s3, s39, 8")
    A.e("s_add_u32 s3, s3, 1024")
    A.e("v_add_u32 v7, s3, v7")
    A.e("v_lshrrev_b32 v2, 2, v0")
    A.e("s_lshl_b32 s3, s35, 7")
    A.e("s_lshl_b32 s37, s34, 4")
    A.e("s_add_u32 s3, s3, s37")
    A.e("v_add_u32 v2, s3, v2")
    A.e("v_lshlrev_b32 v2, 11, v2")
    A.e("v_bfe_u32 v15, v0, 4, 2")
    A.e("v_xor_b32 v15, v15, v14")
    A.e("v_lshl_add_u32 v2, v15, 4, v2")
    A.e("v_lshrrev_b32 v3, 4, v0")
    A.e("v_lshlrev_b32 v3, 6, v3")
    A.e("v_lshl_add_u32 v3, v14, 4, v3")
    A.e("s_lshl_b32 s3, s34, 2")
    A.e("v_add_u32 v1, s3, v12")
    A.e(f"s_mul_i32 s31, s34, {K1_WSLOT}")
    A.e(f"s_add_u32 s41, s31, {K1_LDS}")
    ROT = os.environ.get("ROT", "")
    if ROT == "xcd":
        A.e("s_and_b32 s65, s2, 7"); A.e("s_lshl_b32 s65, s65, 2")
    elif ROT == "mt":
        A.e("s_and_b32 s65, s35, 7"); A.e("s_lshl_b32 s65, s65, 2")
    elif ROT == "nt":
        A.e("s_and_b32 s65, s40, 3"); A.e("s_lshl_b32 s65, s65, 3")
    elif ROT == "wg":
        A.e("s_lshr_b32 s65, s2, 3")
    elif ROT == "xcd2":
        A.e("s_and_b32 s65, s2, 7"); A.e("s_lshl_b32 s65, s65, 1")
    else:
        A.e("s_mov_b32 s65, 0")
    A.e("s_lshl_b32 s28, s65, 6")
    A.e("s_lshl_b32 s30, s65, 11")
    A.e("s_mov_b32 s32, 0")
    A.e("s_mov_b32 s43, 0")
    A.e(f"s_mov_b32 s64, {(-5*K1_SLOT) & 0xffffffff}")
    for r in range(16, 80):
        A.e(f"v_mov_b32 v{r}, 0")
    A.e("s_waitcnt lgkmcnt(0)")
    srd(A, 24, 60, WS_BYTES)
    A.e("s_cmp_lt_u32 s40, 4")
    A.e("s_cbranch_scc1 K1_T0")
    A.e("s_cmp_lt_u32 s40, 12")
    A.e("s_cbranch_scc1 K1_T1")
    A.e("s_cmp_lt_u32 s40, 14")
    A.e("s_cbranch_scc1 K1_T2")
    A.e("s_branch K1_T3")
    for T in range(4):
        A.label(f"K1_T{T}")
        A.fence()
        k1_type(A, T)
        A.e("s_endpgm")
    A.label(Lend)
    A.e("s_endpgm")

ACC = lambda rt, ct: 16 + (rt * 2 + ct) * 16
WPK = 156

def k1_type(A, T):
    isB = T >= 2
    pitch = 2048 if isB else 6144
    wbytes = 1024 * pitch
    D = 4 if isB else 3
    xptr = 52 if isB else 44
    wptr = 54 if isB else 46
    if T == 0:
        A.e("s_lshl_b32 s42, s40, 9")
        A.e("s_add_u32 s37, s42, 256")
    elif T == 1:
        A.e("s_sub_u32 s3, s40, 4")
        A.e("s_lshl_b32 s3, s3, 8")
        A.e("s_add_u32 s42, s3, 2048")
        A.e("s_add_u32 s37, s3, 4096")
    else:
        A.e("s_sub_u32 s3, s40, 12")
        A.e("s_lshl_b32 s42, s3, 9")
        A.e("s_add_u32 s37, s42, 256")
    srd(A, 8, xptr, 2048 * 2048)
    for (d, cb, off) in ((12, 42, 1024), (16, 37, 2048)):
        A.e(f"s_add_u32 s{d}, s{wptr}, s{cb}")
        A.e(f"s_addc_u32 s{d+1}, s{wptr+1}, 0")
        A.e(f"s_sub_u32 s{d}, s{d}, {off}")
        A.e(f"s_subb_u32 s{d+1}, s{d+1}, 0")
        A.e(f"s_and_b32 s{d+1}, s{d+1}, 0xffff")
        A.e(f"s_sub_u32 s{d+2}, {wbytes + off}, s{cb}")
        A.e(f"s_mov_b32 s{d+3}, 0x00020000")
    A.e(f"s_mul_i32 s29, s65, {32*pitch}")
    A.e(f"v_mul_u32_u24 v1, {pitch}, v1")
    A.e("v_add_u32 v3, v3, v1")
    if isB:
        srd(A, 20, 56 if T == 2 else 58, 65536 + 3072, -3072)
        A.e("s_lshl_b32 s3, s34, 8")
        A.e("v_lshl_add_u32 v4, v0, 2, s3")
        A.e("v_lshrrev_b32 v8, 4, v0")
        A.e("v_xor_b32 v8, v8, v12")
        A.e("v_lshlrev_b32 v8, 4, v8")
        A.e("v_lshl_add_u32 v8, v10, 6, v8")
        A.e("v_add_u32 v8, s31, v8")
        A.e("v_lshrrev_b32 v9, 4, v0")
        A.e(f"v_mul_u32_u24 v9, {2*K1_WSLOT}, v9")
        A.e("v_lshl_add_u32 v9, v12, 6, v9")
        A.e("v_lshl_add_u32 v9, v14, 3, v9")
        A.e("s_and_b32 s3, s40, 1")
        A.e("s_lshl_b32 s3, s3, 5")
        A.e("s_add_u32 s3, s3, 3072")
        A.e("v_add_u32 v9, s3, v9")
        for r in range(120, 124):
            A.e(f"v_mov_b32 v{r}, 0")
    if T <= 1:
        srd(A, 20, 48, 65536)
        if T == 1:
            A.e("s_sub_u32 s3, s40, 4")
            A.e("s_lshl_b32 s3, s3, 2")
            A.e("s_add_u32 s36, s3, s39")
        else:
            A.e("s_lshl_b32 s3, s40, 3")
            A.e("s_add_u32 s36, s3, s39")
        A.e("s_lshl_b32 s3, s36, 11")
        A.e("v_and_b32 v8, 31, v0")
        A.e("v_lshlrev_b32 v8, 1, v8")
        A.e("v_lshl_add_u32 v8, v13, 8, v8")
        for ct in range(2 if T == 0 else 1):
            if ct: A.e("s_add_u32 s3, s3, 8192")
            for t in range(2):
                for j in range(8):
                    d = 16 * t + 8 * (j >> 2) + (j & 3)
                    A.e(f"buffer_load_ushort v{124 + ct*16 + t*8 + j}, v8, s[20:23], s3 offen offset:{d*64}")

    def dma():
        A.e("s_mov_b32 m0, s31")
        A.e(f"s_add_u32 s31, s31, {K1_SLOT}")
        A.e("buffer_load_dwordx4 v2, s[8:11], s28 offen lds")
        A.e("buffer_load_dwordx4 v3, s[12:15], s29 offen offset:1024 lds")
        A.e("buffer_load_dwordx4 v3, s[16:19], s29 offen offset:2048 lds")
        if isB:
            A.e("buffer_load_dword v4, s[20:23], s30 offen offset:3072 lds")
            A.e("s_add_u32 s30, s30, 2048")
            A.e("s_and_b32 s30, s30, 65535")
        A.e("s_add_u32 s28, s28, 64")
        A.e("s_and_b32 s28, s28, 2047")
        A.e(f"s_add_u32 s29, s29, {32*pitch}")
        A.e(f"s_cmp_eq_u32 s29, {1024*pitch}")
        A.e("s_cselect_b32 s29, 0, s29")
        A.e("s_cmp_ge_u32 s31, s41")
        A.e(f"s_cselect_b32 s3, {K1_LDS}, 0")
        A.e("s_sub_u32 s31, s31, s3")

    S = [dict(X=[80, 84], W=[88, 92]), dict(X=[96, 100], W=[104, 108])]
    def rdX(t, rt):
        return f"ds_read_b128 {vr(S[t]['X'][rt],4)}, v{5+t} offset:{rt*2*K1_WSLOT}"
    def rdW(t, ct, h):
        return f"ds_read_b64_tr_b16 {vr(S[t]['W'][ct]+2*h,2)}, v7 offset:{t*4*K1_WSLOT + h*K1_WSLOT + ct*1024}"
    def mm(t, rt, ct):
        x, w = S[t]['X'][rt], S[t]['W'][ct]
        if NOMFMA: return
        if os.environ.get("M16"):
            mfma16(A, ACC(rt, ct) + 8*t, w, x); mfma16(A, ACC(rt, ct) + 8*t + 4, x, w); return
        if T == 1 and ct == 1: mfma32(A, ACC(rt, ct), x, w)
        else: mfma32(A, ACC(rt, ct), w, x)

    for s in range(5):
        dma()
    XPF = int(os.environ.get("XPF", "0"))
    npf = 0
    if XPF & 3:
        A.e("s_lshl_b32 s3, s35, 2")
        A.e("s_and_b32 s33, s40, 3")
        A.e("s_add_u32 s3, s3, s33")
        A.e("s_lshl_b32 s3, s3, 3")
        A.e("s_add_u32 s3, s3, s34")
        A.e("s_lshl_b32 s3, s3, 13")
        if XPF & 1:
            A.e("v_lshlrev_b32 v189, 7, v0")
            A.e("buffer_load_dword v188, v189, s[8:11], s3 offen"); npf += 1
        else:
            A.e("v_lshlrev_b32 v189, 6, v0")
            A.e("buffer_load_dword v188, v189, s[8:11], s3 offen"); npf += 1
            A.e("s_add_u32 s3, s3, 4096")
            A.e("buffer_load_dword v188, v189, s[8:11], s3 offen"); npf += 1
    if XPF & 4:
        A.e("s_and_b32 s3, s35, 7")
        A.e("s_lshl_b32 s3, s3, 3")
        A.e("s_add_u32 s3, s3, s34")
        A.e(f"s_mul_i32 s3, s3, {16*pitch}")
        A.e("v_lshrrev_b32 v190, 2, v0")
        A.e(f"v_mul_u32_u24 v190, {pitch}, v190")
        A.e("v_and_b32 v191, 1, v0")
        A.e("v_lshl_add_u32 v190, v191, 7, v190")
        A.e("v_bfe_u32 v191, v0, 1, 1")
        A.e(f"v_lshl_add_u32 v190, v191, {11 if T == 1 else 8}, v190")
        A.e("buffer_load_dword v188, v190, s[12:15], s3 offen offset:1024"); npf += 1
    stamp(A, 1)
    if T <= 1:
        A.e(f"s_mov_b32 s62, {f2u(LOG2E):#x}")
        A.e(f"s_mov_b32 s63, {f2u(LOG2E):#x}")
        A.e(f"s_waitcnt vmcnt({5*D+npf})")
        n = 32 if T == 0 else 16
        for i in range(n):
            A.e(f"v_lshlrev_b32 v{124+i}, 16, v{124+i}")
        for i in range(0, n, 2):
            A.e(f"v_pk_mul_f32 {vr(124+i,2)}, {vr(124+i,2)}, s[62:63]")
        for i in range(0, n, 2):
            A.e(f"v_cvt_pk_bf16_f32 v{WPK+i//2}, v{124+i}, v{124+i+1}")
    A.e(f"s_waitcnt vmcnt({4*D+npf})")
    A.e("s_barrier")
    stamp(A, 2)
    for q in (rdX(0, 0), rdW(0, 0, 0), rdW(0, 0, 1), rdW(0, 1, 0), rdW(0, 1, 1), rdX(0, 1)):
        A.e(q)
    L = f"K1_T{T}_loop"
    A.raw(".p2align 6")
    A.label(L)
    st = A.mark()
    A.e("s_waitcnt lgkmcnt(0)")
    mm(0, 0, 0); A.e(rdX(1, 0)); A.e(rdW(1, 0, 0))
    mm(0, 0, 1); A.e(rdW(1, 0, 1)); A.e(rdW(1, 1, 0))
    mm(0, 1, 0); A.e(rdW(1, 1, 1)); A.e(rdX(1, 1))
    A.e("s_cmp_ge_u32 s32, 28")
    mm(0, 1, 1)
    if isB:
        A.e("ds_read_b128 v[112:115], v8")
        A.e("ds_read_b64_tr_b16 v[116:117], v9")
        A.e(f"ds_read_b64_tr_b16 v[118:119], v9 offset:{K1_WSLOT}")
    A.e(f"s_cbranch_scc1 {L}_tw")
    A.e(f"s_waitcnt vmcnt({3*D})")
    A.label(f"{L}_back")
    A.e("s_barrier")
    A.e("s_add_u32 s43, s43, 1")
    A.e(f"s_cmp_eq_u32 s43, {K1_NS}")
    A.e(f"s_cselect_b32 s33, s64, {K1_SLOT}")
    A.e("s_cselect_b32 s43, 0, s43")
    A.e(f"s_waitcnt lgkmcnt({3 if isB else 0})")
    mm(1, 0, 0)
    A.e("v_add_u32 v5, s33, v5")
    A.e("v_add_u32 v7, s33, v7")
    A.e(rdX(0, 0)); A.e(rdW(0, 0, 0))
    mm(1, 0, 1)
    A.e(rdW(0, 0, 1)); A.e(rdW(0, 1, 0)); A.e(rdW(0, 1, 1)); A.e(rdX(0, 1))
    A.e(f"s_cmp_ge_u32 s32, {0 if NODMA else 27}")
    mm(1, 1, 0)
    A.e("v_add_u32 v6, s33, v6")
    A.e(f"s_cbranch_scc1 {L}_nodma")
    dma()
    A.label(f"{L}_nodma")
    if isB:
        A.e("s_waitcnt lgkmcnt(6)")
        if T == 2: mfma16(A, 120, 116, 112)
        else: mfma16(A, 120, 112, 116)
        A.e("v_add_u32 v8, s33, v8")
        A.e("v_add_u32 v9, s33, v9")
    A.e("s_add_u32 s32, s32, 1")
    A.e("s_cmp_lt_u32 s32, 32")
    mm(1, 1, 1)
    A.e(f"s_cbranch_scc1 {L}")
    A.check_loop(st, L)
    A.e(f"s_branch {L}_done")
    A.label(f"{L}_tw")
    A.e("s_cmp_eq_u32 s32, 28")
    A.e(f"s_cbranch_scc1 {L}_tw2")
    A.e("s_cmp_eq_u32 s32, 29")
    A.e(f"s_cbranch_scc1 {L}_tw1")
    A.e("s_waitcnt vmcnt(0)")
    A.e(f"s_branch {L}_back")
    A.label(f"{L}_tw2")
    A.e(f"s_waitcnt vmcnt({2*D})")
    A.e(f"s_branch {L}_back")
    A.label(f"{L}_tw1")
    A.e(f"s_waitcnt vmcnt({D})")
    A.e(f"s_branch {L}_back")
    A.label(f"{L}_done")
    A.fence()
    stamp(A, 3)
    A.e("s_nop 15")
    A.e("s_waitcnt lgkmcnt(0)")
    if T == 1: k1_epi_kv(A)
    elif T == 0: k1_epi_eq(A)
    else: k1_epi_q(A, T)
    if DBG:
        stamp(A, 4)
        A.e("s_waitcnt vmcnt(0)")
        stamp(A, 5)
        dbg_dump(A, 6)

def pack16(A, base):
    for i in range(8):
        A.e(f"v_cvt_pk_bf16_f32 v{base+i}, v{base+2*i}, v{base+2*i+1}")

def k1_epi_q(A, T):
    isB = T >= 2
    if isB: A.e("s_sub_u32 s3, s40, 12")
    else: A.e("s_mov_b32 s3, s40")
    A.e("s_lshl_b32 s3, s3, 3")
    A.e("s_add_u32 s3, s3, s39")
    A.e("s_lshl_b32 s3, s3, 17")
    A.e("s_lshl_b32 s36, s35, 13")
    A.e("s_add_u32 s3, s3, s36")
    A.e("s_lshl_b32 s36, s38, 12")
    A.e("s_add_u32 s3, s3, s36")
    if isB: A.e(f"s_add_u32 s3, s3, {WS_QB}")
    A.e(f"s_add_u32 s36, s3, {4*131072}")
    A.e("v_lshlrev_b32 v1, 4, v0")
    for rt in range(2):
        for ct in range(2):
            b = ACC(rt, ct)
            pack16(A, b)
            for t in range(2):
                A.e(f"buffer_store_dwordx4 {vr(b+4*t,4)}, v1, s[24:27], s{36 if ct else 3} offen offset:{rt*2048+t*1024}")
    if isB:
        if T == 2:
            c = f2u(LOG2E / 32 ** 0.5)
            for r in range(120, 124):
                A.e(f"v_mul_f32 v{r}, {c:#x}, v{r}")
        A.e("v_cvt_pk_bf16_f32 v120, v120, v121")
        A.e("v_cvt_pk_bf16_f32 v121, v122, v123")
        A.e("v_bfe_u32 v2, v0, 4, 1")
        A.e("v_lshlrev_b32 v2, 9, v2")
        A.e("v_lshl_add_u32 v2, v10, 4, v2")
        A.e("v_lshrrev_b32 v3, 5, v0")
        A.e("v_lshl_add_u32 v2, v3, 3, v2")
        A.e("s_lshl_b32 s3, s35, 2")
        A.e("s_lshr_b32 s36, s34, 1")
        A.e("s_add_u32 s3, s3, s36")
        A.e("s_lshl_b32 s3, s3, 12")
        A.e(f"s_add_u32 s3, s3, {WS_KV + (2048 if T == 3 else 0)}")
        A.e("s_and_b32 s36, s40, 1")
        A.e("s_and_b32 s37, s34, 1")
        a, b_ = (36, 37) if T == 2 else (37, 36)
        A.e(f"s_lshl_b32 s{a}, s{a}, 10")
        A.e(f"s_lshl_b32 s{b_}, s{b_}, 8")
        A.e("s_add_u32 s3, s3, s36")
        A.e("s_add_u32 s3, s3, s37")
        A.e("buffer_store_dwordx2 v[120:121], v2, s[24:27], s3 offen")


def absmax_check(A, Ps, m, slow):
    regs = [p + i for p in Ps for i in range(16)]
    A.e(f"v_max3_f32 v{m}, |v{regs[0]}|, |v{regs[1]}|, |v{regs[2]}|")
    rest = regs[3:]
    while len(rest) >= 2:
        A.e(f"v_max3_f32 v{m}, v{m}, |v{rest[0]}|, |v{rest[1]}|")
        rest = rest[2:]
    if rest: A.e(f"v_max_f32 v{m}, v{m}, |v{rest[0]}|")
    A.e(f"v_cmp_nle_f32 vcc, v{m}, v{m+1}")
    A.e("s_nop 3")
    A.e("s_cmp_lg_u64 vcc, 0")
    A.e(f"s_cbranch_scc1 {slow}")

def true_shift(A, P, U, t0):
    mx, mn, x, y = t0, t0 + 2, t0 + 4, t0 + 5
    A.e(f"v_max3_f32 v{mx}, v{P}, v{P+1}, v{P+2}")
    A.e(f"v_min3_f32 v{mn}, v{P}, v{P+1}, v{P+2}")
    for i in range(3, 15, 2):
        A.e(f"v_max3_f32 v{mx}, v{mx}, v{P+i}, v{P+i+1}")
        A.e(f"v_min3_f32 v{mn}, v{mn}, v{P+i}, v{P+i+1}")
    A.e(f"v_max_f32 v{mx}, v{mx}, v{P+15}")
    A.e(f"v_min_f32 v{mn}, v{mn}, v{P+15}")
    A.e(f"v_mov_b32 v{x}, v{mx}")
    A.e(f"v_mov_b32 v{y}, v{mn}")
    A.e(f"v_permlane32_swap_b32 v{mx}, v{x}")
    A.e(f"v_permlane32_swap_b32 v{mn}, v{y}")
    A.e(f"v_max_f32 v{mx}, v{mx}, v{x}")
    A.e(f"v_min_f32 v{mn}, v{mn}, v{y}")
    for i in range(16):
        A.e(f"v_sub_f32 v{U+i}, v{P+i}, v{mn}")
        A.e(f"v_sub_f32 v{P+i}, v{P+i}, v{mx}")

def k1_epi_eq(A):
    units = [(rt, ct) for ct in range(2) for rt in range(2)]
    P = {u: 80 + 16 * i for i, u in enumerate(units)}
    U = 172
    A.e(f"v_mov_b32 v9, {f2u(SAFE):#x}")
    A.e("s_lshl_b32 s3, s36, 18")
    A.e("s_lshl_b32 s37, s35, 14")
    A.e("s_add_u32 s3, s3, s37")
    A.e("s_lshl_b32 s37, s38, 13")
    A.e("s_add_u32 s3, s3, s37")
    A.e(f"s_add_u32 s37, s3, {4 << 18}")
    A.e("v_lshlrev_b32 v1, 4, v0")
    A.e("v_add_u32 v2, 4096, v1")
    for u in units:
        rt, ct = u
        pack16(A, ACC(rt, ct))
        mfma32(A, P[u], WPK + 8 * ct, ACC(rt, ct), "0")
        mfma32(A, P[u], WPK + 8 * ct + 4, ACC(rt, ct) + 4)
    absmax_check(A, [P[u] for u in units], 8, "K1_eq_slow")
    def tail(u, src):
        rt, ct = u
        p = P[u]
        for half in range(2):
            for i in range(8 * half, 8 * half + 8):
                A.e(f"v_exp_f32 v{U+i}, -v{src+i}")
            for i in range(8 * half, 8 * half + 8):
                A.e(f"v_exp_f32 v{p+i}, v{p+i}")
            o = ACC(rt, ct) + 8 * half
            for i in range(4):
                A.e(f"v_cvt_pk_bf16_f32 v{o+4+i}, v{U+8*half+2*i}, v{U+8*half+2*i+1}")
            for i in range(4):
                A.e(f"v_cvt_pk_bf16_f32 v{o+i}, v{p+8*half+2*i}, v{p+8*half+2*i+1}")
            A.e(f"buffer_store_dwordx4 {vr(o+4,4)}, v{1+rt}, s[24:27], s{37 if ct else 3} offen offset:{2048 + half*1024}")
            A.e(f"buffer_store_dwordx4 {vr(o,4)}, v{1+rt}, s[24:27], s{37 if ct else 3} offen offset:{half*1024}")
    for u in units: tail(u, P[u])
    if DBG:
        stamp(A, 4)
        A.e("s_waitcnt vmcnt(0)")
        stamp(A, 5)
        dbg_dump(A, 6)
    A.e("s_endpgm")
    A.label("K1_eq_slow")
    A.fence()
    for u in units:
        true_shift(A, P[u], U, 2 + 8)
        tail_slow = tail
        tail(u, U)

PHI_BASE = 2 * K1_SLOT
PHI_PITCH = 136
PHI_WAVE = 64 * PHI_PITCH
XB_BASE = PHI_BASE + 8 * PHI_WAVE

def k1_epi_kv(A):
    Pr = [124, 140]
    Ur = [80, 96]
    KV = [156, 172]
    ZS = [112, 116]
    SEL = 120
    A.e(f"v_mov_b32 v9, {f2u(SAFE):#x}")
    for rt in range(2):
        pack16(A, ACC(rt, 0))
        mfma32(A, Pr[rt], WPK, ACC(rt, 0), "0")
        mfma32(A, Pr[rt], WPK + 4, ACC(rt, 0) + 4)
    for rt in range(2):
        pack16(A, ACC(rt, 1))
    A.e(f"s_mul_i32 s3, s34, {PHI_WAVE}")
    A.e(f"s_add_u32 s3, s3, {PHI_BASE}")
    A.e("v_and_b32 v1, 31, v0")
    A.e(f"v_mul_u32_u24 v1, {PHI_PITCH}, v1")
    A.e("v_lshl_add_u32 v1, v13, 3, v1")
    A.e("v_add_u32 v1, s3, v1")
    A.e("v_lshl_add_u32 v2, v13, 2, v12")
    A.e(f"v_mul_u32_u24 v2, {PHI_PITCH}, v2")
    A.e("v_bfe_u32 v3, v0, 4, 1")
    A.e("v_lshl_add_u32 v2, v3, 5, v2")
    A.e("v_lshl_add_u32 v2, v14, 3, v2")
    A.e("v_add_u32 v2, s3, v2")
    A.e("v_lshrrev_b32 v3, 2, v0")
    A.e("v_xor_b32 v3, v3, v0")
    A.e("v_and_b32 v3, 4, v3")
    A.e("v_or_b32 v3, v3, v14")
    A.e("v_cmp_eq_u32 vcc, 0, v3")
    A.e("v_mov_b32 v4, 0x3f803f80")
    A.e("v_mov_b32 v5, 0")
    for i in range(4):
        A.e(f"v_cndmask_b32 v{SEL+i}, v5, v4, vcc")
    absmax_check(A, Pr, 8, "K1_kv_slow")
    def exps(rt, src):
        P, U = Pr[rt], Ur[rt]
        for i in range(16):
            A.e(f"v_exp_f32 v{U+i}, -v{src+i}")
            A.e(f"v_exp_f32 v{P+i}, v{P+i}")
    for rt in range(2): exps(rt, Pr[rt])
    A.label("K1_kv_common")
    A.e("s_nop 0")
    sp = [4, 10]; sn = [6, 14+2]
    sp = [4, 8]; sn = [6, 10]
    for rt in range(2):
        P, U = Pr[rt], Ur[rt]
        A.e(f"v_pk_add_f32 {vr(sp[rt],2)}, {vr(P,2)}, {vr(P+2,2)}")
        A.e(f"v_pk_add_f32 {vr(sn[rt],2)}, {vr(U,2)}, {vr(U+2,2)}")
        for i in range(4, 16, 2):
            A.e(f"v_pk_add_f32 {vr(sp[rt],2)}, {vr(sp[rt],2)}, {vr(P+i,2)}")
            A.e(f"v_pk_add_f32 {vr(sn[rt],2)}, {vr(sn[rt],2)}, {vr(U+i,2)}")
    for rt in range(2):
        A.e(f"v_add_f32 v{sp[rt]}, v{sp[rt]}, v{sp[rt]+1}")
        A.e(f"v_add_f32 v{sn[rt]}, v{sn[rt]}, v{sn[rt]+1}")
    for rt in range(2):
        A.e(f"v_permlane32_swap_b32 v{sp[rt]}, v{sn[rt]}")
    for rt in range(2):
        A.e(f"v_add_f32 v{sp[rt]}, v{sp[rt]}, v{sn[rt]}")
    for rt in range(2):
        A.e(f"v_rcp_f32 v{sp[rt]}, v{sp[rt]}")
    for rt in range(2):
        A.e(f"v_mov_b32 v{sn[rt]}, v{sp[rt]}")
    for rt in range(2):
        A.e(f"v_permlane32_swap_b32 v{sp[rt]}, v{sn[rt]}")
    for rt in range(2):
        P, U = Pr[rt], Ur[rt]
        for q in range(4):
            for i in (4 * q, 4 * q + 2):
                A.e(f"v_pk_mul_f32 {vr(P+i,2)}, {vr(P+i,2)}, {vr(sp[rt],2)} op_sel_hi:[1,0]")
                A.e(f"v_pk_mul_f32 {vr(U+i,2)}, {vr(U+i,2)}, {vr(sn[rt],2)} op_sel_hi:[1,0]")
            for i in (4 * q, 4 * q + 2):
                A.e(f"v_cvt_pk_bf16_f32 v{P+i//2}, v{P+i}, v{P+i+1}")
                A.e(f"v_cvt_pk_bf16_f32 v{U+i//2}, v{U+i}, v{U+i+1}")
            A.e(f"ds_write_b64 v1, {vr(P+2*q,2)} offset:{rt*32*PHI_PITCH + q*16}")
            A.e(f"ds_write_b64 v1, {vr(U+2*q,2)} offset:{rt*32*PHI_PITCH + 64 + q*16}")
    A.e("s_waitcnt lgkmcnt(0)")
    F = lambda ft, rt, t: 80 + ((ft * 2 + rt) * 2 + t) * 4
    for ft in range(2):
        for rt in range(2):
            for t in range(2):
                off = (rt * 32 + 16 * t) * PHI_PITCH + ft * 64
                A.e(f"ds_read_b64_tr_b16 {vr(F(ft,rt,t),2)}, v2 offset:{off}")
                A.e(f"ds_read_b64_tr_b16 {vr(F(ft,rt,t)+2,2)}, v2 offset:{off + 8*PHI_PITCH}")
    A.e("s_lshl_b32 s37, s36, 5")
    A.e("s_lshl_b32 s3, s35, 1")
    A.e("s_add_u32 s37, s37, s3")
    A.e("s_add_u32 s37, s37, s38")
    A.e("s_lshl_b32 s37, s37, 8")
    A.e(f"s_add_u32 s37, s37, {WS_ZP}")
    A.e("v_lshlrev_b32 v6, 2, v0")
    A.e("v_lshlrev_b32 v1, 4, v0")
    A.e("s_lshl_b32 s3, s39, 13")
    A.e(f"s_add_u32 s3, s3, {XB_BASE}")
    A.e("v_add_u32 v2, s3, v1")
    A.e("s_lshl_b32 s3, s36, 4")
    A.e("s_add_u32 s3, s3, s35")
    A.e("s_lshl_b32 s3, s3, 1")
    A.e("s_add_u32 s3, s3, s38")
    A.e("s_lshl_b32 s3, s3, 12")
    A.e(f"s_add_u32 s3, s3, {WS_KVP}")
    A.e("s_mov_b32 vcc_lo, 0")
    A.e("s_mov_b32 vcc_hi, -1")
    n = 0
    for ft in range(2):
        for rt in range(2):
            for t in range(2):
                n += 1
                A.e(f"s_waitcnt lgkmcnt({16 - 2*n})")
                first = "0" if (rt == 0 and t == 0) else None
                mfma32(A, KV[ft], F(ft, rt, t), ACC(rt, 1) + 4 * t, first)
                mfma16(A, ZS[ft], SEL, F(ft, rt, t), first)
    A.e(f"v_cndmask_b32 v4, v{ZS[0]}, v{ZS[1]}, vcc")
    A.e("buffer_store_dword v4, v6, s[24:27], s37 offen")
    A.e("s_cmp_eq_u32 s38, 0")
    A.e("s_nop 7")
    A.e("s_cbranch_scc0 K1_kv_wm1")
    hist = list(A.hist)
    for wm in range(2):
        if wm == 1:
            A.label("K1_kv_wm1")
            A.hist = list(hist)
        keep, send = KV[wm], KV[1 - wm]
        for rq in range(4):
            A.e(f"ds_write_b128 v2, {vr(send+4*rq,4)} offset:{(1-wm)*4096 + rq*1024}")
        A.e("s_waitcnt lgkmcnt(0)")
        A.e("s_barrier")
        for rq in range(4):
            A.e(f"ds_read_b128 {vr(80+4*rq,4)}, v2 offset:{wm*4096 + rq*1024}")
        for rq in range(4):
            A.e(f"s_waitcnt lgkmcnt({3-rq})")
            A.e(f"v_pk_add_f32 {vr(keep+4*rq,2)}, {vr(keep+4*rq,2)}, {vr(80+4*rq,2)}")
            A.e(f"v_pk_add_f32 {vr(keep+4*rq+2,2)}, {vr(keep+4*rq+2,2)}, {vr(80+4*rq+2,2)}")
            A.e(f"buffer_store_dwordx4 {vr(keep+4*rq,4)}, v1, s[24:27], s3 offen offset:{rq*1024}")
        if DBG:
            stamp(A, 4)
            A.e("s_waitcnt vmcnt(0)")
            stamp(A, 5)
            dbg_dump(A, 6)
        A.e("s_endpgm")
    A.label("K1_kv_slow")
    A.fence()
    for rt in range(2):
        true_shift(A, Pr[rt], Ur[rt], 4)
        exps(rt, Ur[rt])
    A.e("s_branch K1_kv_common")
```

```python
from asmlib import *
import struct

WS_EQ = 0; WS_QB = 8 << 20; WS_KV = 12 << 20; WS_KVP = 13 << 20; WS_ZP = 17 << 20
WS_OA = 18 << 20; WS_OB = 22 << 20; WS_BYTES = 26 << 20
SAFE = 60.0
LOG2E = 1.4426950408889634
def f2u(x): return struct.unpack("<I", struct.pack("<f", x))[0]

K1_WSLOT = 3328
K1_SLOT = 8 * K1_WSLOT
K1_NS = 6
K1_LDS = K1_SLOT * K1_NS
K1_VGPR = 192

import os
DBG = int(os.environ.get("K1DBG", "0"))
TL = int(os.environ.get("TL", "0"))
KIDX = [0]
NODMA = int(os.environ.get("NODMA", "0"))
NOMFMA = int(os.environ.get("NOMFMA", "0"))
NOLDS = int(os.environ.get("NOLDS", "0"))
def stamp(A, i):
    if DBG:
        A.e(f"s_memtime s[{70+2*i}:{71+2*i}]")
def dbg_dump(A, n):
    if not DBG: return
    if TL:
        k = KIDX[0]
        A.e("s_memrealtime s[86:87]")
        A.e("s_load_dwordx2 s[88:89], s[0:1], 80")
        A.e("s_waitcnt lgkmcnt(0)")
        srd(A, 92, 88, 256, 512 * (TL - 1 - k))
        L = A.newlabel("dbgskip")
        A.e("s_cmp_lg_u32 s34, 0")
        A.e(f"s_cbranch_scc1 {L}")
        A.e("s_and_b32 s3, s2, 127")
        A.e("s_cmp_lg_u32 s3, 77")
        A.e(f"s_cbranch_scc1 {L}")
        A.e("s_lshr_b32 s3, s2, 7")
        A.e("s_lshl_b32 s3, s3, 3")
        A.e("v_mov_b32 v1, 0")
        A.e("v_mov_b32 v2, s84")
        A.e("v_mov_b32 v3, s86")
        A.e("s_mov_b64 exec, 1")
        A.e(f"buffer_store_dwordx2 v[2:3], v1, s[92:95], s3 offen offset:{16*k} sc1")
        A.label(L)
        return
    L = A.newlabel("dbgskip")
    A.e("s_memrealtime s[86:87]")
    A.e("s_waitcnt lgkmcnt(0)")
    A.e("s_lshr_b32 s3, s2, 3")
    A.e(f"s_cmp_lg_u32 s3, {DBG-1}")
    A.e(f"s_cbranch_scc1 {L}")
    A.e("s_cmp_lg_u32 s34, 0")
    A.e(f"s_cbranch_scc1 {L}")
    A.e("s_load_dwordx2 s[88:89], s[0:1], 80")
    A.e("s_waitcnt lgkmcnt(0)")
    srd(A, 92, 88, 256)
    A.e("s_and_b32 s3, s2, 7")
    A.e("s_lshl_b32 s3, s3, 5")
    A.e("v_mov_b32 v1, 0")
    for i in range(1, n):
        A.e(f"s_sub_u32 s{70+2*i}, s{70+2*i}, s70")
        A.e(f"v_mov_b32 v2, s{70+2*i}")
        A.e(f"buffer_store_dword v2, v1, s[92:95], s3 offen offset:{4*i}")
    A.e("s_sub_u32 s86, s86, s84")
    A.e("v_mov_b32 v2, s86")
    A.e(f"buffer_store_dword v2, v1, s[92:95], s3 offen offset:28")
    A.label(L)

def gen_k1(A, name):
    KIDX[0] = 0
    kernel_header(A, name)
    Lend = "K1_end"
    A.e("s_cmp_ge_u32 s2, 256")
    A.e(f"s_cbranch_scc1 {Lend}")
    stamp(A, 0)
    if DBG: A.e("s_memrealtime s[84:85]")
    A.e("s_load_dwordx16 s[44:59], s[0:1], 0")
    A.e("s_load_dwordx2 s[60:61], s[0:1], 88")
    A.e("v_lshrrev_b32 v1, 6, v0")
    A.e("v_and_b32 v0, 63, v0")
    A.e("v_readfirstlane_b32 s34, v1")
    A.e("s_and_b32 s3, s2, 7")
    A.e("s_lshr_b32 s36, s2, 3")
    A.e("s_and_b32 s35, s3, 1")
    A.e("s_lshl_b32 s35, s35, 3")
    A.e("s_and_b32 s37, s36, 7")
    A.e("s_add_u32 s35, s35, s37")
    A.e("s_lshr_b32 s40, s3, 1")
    A.e("s_lshl_b32 s40, s40, 2")
    A.e("s_lshr_b32 s37, s36, 3")
    A.e("s_add_u32 s40, s40, s37")
    A.e("s_lshr_b32 s38, s34, 2")
    A.e("s_and_b32 s39, s34, 3")
    A.e("v_and_b32 v10, 15, v0")
    A.e("v_lshlrev_b32 v5, 6, v10")
    A.e("v_bfe_u32 v11, v0, 4, 1")
    A.e(f"v_mul_u32_u24 v11, {K1_WSLOT}, v11")
    A.e("v_add_u32 v5, v5, v11")
    A.e(f"s_mul_i32 s3, s38, {4*K1_WSLOT}")
    A.e("v_add_u32 v5, s3, v5")
    A.e("v_bfe_u32 v12, v0, 2, 2")
    A.e("v_lshrrev_b32 v13, 5, v0")
    A.e("v_xor_b32 v14, v13, v12")
    A.e("v_xor_b32 v15, 2, v14")
    A.e("v_lshl_add_u32 v6, v15, 4, v5")
    A.e("v_lshl_add_u32 v5, v14, 4, v5")
    A.e(f"v_mul_u32_u24 v7, {2*K1_WSLOT}, v13")
    A.e("v_lshl_add_u32 v7, v12, 6, v7")
    A.e("v_bfe_u32 v11, v0, 4, 1")
    A.e("v_lshl_add_u32 v7, v11, 5, v7")
    A.e("v_and_b32 v14, 3, v0")
    A.e("v_lshl_add_u32 v7, v14, 3, v7")
    A.e("s_lshl_b32 s3, s39, 8")
    A.e("s_add_u32 s3, s3, 1024")
    A.e("v_add_u32 v7, s3, v7")
    A.e("v_lshrrev_b32 v2, 2, v0")
    A.e("s_lshl_b32 s3, s35, 7")
    A.e("s_lshl_b32 s37, s34, 4")
    A.e("s_add_u32 s3, s3, s37")
    A.e("v_add_u32 v2, s3, v2")
    A.e("v_lshlrev_b32 v2, 11, v2")
    A.e("v_bfe_u32 v15, v0, 4, 2")
    A.e("v_xor_b32 v15, v15, v14")
    A.e("v_lshl_add_u32 v2, v15, 4, v2")
    A.e("v_lshrrev_b32 v3, 4, v0")
    A.e("v_lshlrev_b32 v3, 6, v3")
    A.e("v_lshl_add_u32 v3, v14, 4, v3")
    A.e("s_lshl_b32 s3, s34, 2")
    A.e("v_add_u32 v1, s3, v12")
    A.e(f"s_mul_i32 s31, s34, {K1_WSLOT}")
    A.e(f"s_add_u32 s41, s31, {K1_LDS}")
    ROT = os.environ.get("ROT", "")
    if ROT == "xcd":
        A.e("s_and_b32 s65, s2, 7"); A.e("s_lshl_b32 s65, s65, 2")
    elif ROT == "mt":
        A.e("s_and_b32 s65, s35, 7"); A.e("s_lshl_b32 s65, s65, 2")
    elif ROT == "nt":
        A.e("s_and_b32 s65, s40, 3"); A.e("s_lshl_b32 s65, s65, 3")
    elif ROT == "wg":
        A.e("s_lshr_b32 s65, s2, 3")
    elif ROT == "xcd2":
        A.e("s_and_b32 s65, s2, 7"); A.e("s_lshl_b32 s65, s65, 1")
    else:
        A.e("s_mov_b32 s65, 0")
    A.e("s_lshl_b32 s28, s65, 6")
    A.e("s_lshl_b32 s30, s65, 11")
    A.e("s_mov_b32 s32, 0")
    A.e("s_mov_b32 s43, 0")
    A.e(f"s_mov_b32 s64, {(-5*K1_SLOT) & 0xffffffff}")
    for r in range(16, 80):
        A.e(f"v_mov_b32 v{r}, 0")
    A.e("s_waitcnt lgkmcnt(0)")
    srd(A, 24, 60, WS_BYTES)
    A.e("s_cmp_lt_u32 s40, 4")
    A.e("s_cbranch_scc1 K1_T0")
    A.e("s_cmp_lt_u32 s40, 12")
    A.e("s_cbranch_scc1 K1_T1")
    A.e("s_cmp_lt_u32 s40, 14")
    A.e("s_cbranch_scc1 K1_T2")
    A.e("s_branch K1_T3")
    for T in range(4):
        A.label(f"K1_T{T}")
        A.fence()
        k1_type(A, T)
        A.e("s_endpgm")
    A.label(Lend)
    A.e("s_endpgm")

ACC = lambda rt, ct: 16 + (rt * 2 + ct) * 16
WPK = 156

def k1_type(A, T):
    isB = T >= 2
    pitch = 2048 if isB else 6144
    wbytes = 1024 * pitch
    D = 4 if isB else 3
    xptr = 52 if isB else 44
    wptr = 54 if isB else 46
    if T == 0:
        A.e("s_lshl_b32 s42, s40, 9")
        A.e("s_add_u32 s37, s42, 256")
    elif T == 1:
        A.e("s_sub_u32 s3, s40, 4")
        A.e("s_lshl_b32 s3, s3, 8")
        A.e("s_add_u32 s42, s3, 2048")
        A.e("s_add_u32 s37, s3, 4096")
    else:
        A.e("s_sub_u32 s3, s40, 12")
        A.e("s_lshl_b32 s42, s3, 9")
        A.e("s_add_u32 s37, s42, 256")
    srd(A, 8, xptr, 2048 * 2048)
    for (d, cb, off) in ((12, 42, 1024), (16, 37, 2048)):
        A.e(f"s_add_u32 s{d}, s{wptr}, s{cb}")
        A.e(f"s_addc_u32 s{d+1}, s{wptr+1}, 0")
        A.e(f"s_sub_u32 s{d}, s{d}, {off}")
        A.e(f"s_subb_u32 s{d+1}, s{d+1}, 0")
        A.e(f"s_and_b32 s{d+1}, s{d+1}, 0xffff")
        A.e(f"s_sub_u32 s{d+2}, {wbytes + off}, s{cb}")
        A.e(f"s_mov_b32 s{d+3}, 0x00020000")
    A.e(f"s_mul_i32 s29, s65, {32*pitch}")
    A.e(f"v_mul_u32_u24 v1, {pitch}, v1")
    A.e("v_add_u32 v3, v3, v1")
    if isB:
        srd(A, 20, 56 if T == 2 else 58, 65536 + 3072, -3072)
        A.e("s_lshl_b32 s3, s34, 8")
        A.e("v_lshl_add_u32 v4, v0, 2, s3")
        A.e("v_lshrrev_b32 v8, 4, v0")
        A.e("v_xor_b32 v8, v8, v12")
        A.e("v_lshlrev_b32 v8, 4, v8")
        A.e("v_lshl_add_u32 v8, v10, 6, v8")
        A.e("v_add_u32 v8, s31, v8")
        A.e("v_lshrrev_b32 v9, 4, v0")
        A.e(f"v_mul_u32_u24 v9, {2*K1_WSLOT}, v9")
        A.e("v_lshl_add_u32 v9, v12, 6, v9")
        A.e("v_lshl_add_u32 v9, v14, 3, v9")
        A.e("s_and_b32 s3, s40, 1")
        A.e("s_lshl_b32 s3, s3, 5")
        A.e("s_add_u32 s3, s3, 3072")
        A.e("v_add_u32 v9, s3, v9")
        for r in range(120, 124):
            A.e(f"v_mov_b32 v{r}, 0")
    if T <= 1:
        srd(A, 20, 48, 65536)
        if T == 1:
            A.e("s_sub_u32 s3, s40, 4")
            A.e("s_lshl_b32 s3, s3, 2")
            A.e("s_add_u32 s36, s3, s39")
        else:
            A.e("s_lshl_b32 s3, s40, 3")
            A.e("s_add_u32 s36, s3, s39")
        A.e("s_lshl_b32 s3, s36, 11")
        A.e("v_and_b32 v8, 31, v0")
        A.e("v_lshlrev_b32 v8, 1, v8")
        A.e("v_lshl_add_u32 v8, v13, 8, v8")
        for ct in range(2 if T == 0 else 1):
            if ct: A.e("s_add_u32 s3, s3, 8192")
            for t in range(2):
                for j in range(8):
                    d = 16 * t + 8 * (j >> 2) + (j & 3)
                    A.e(f"buffer_load_ushort v{124 + ct*16 + t*8 + j}, v8, s[20:23], s3 offen offset:{d*64}")

    def dma():
        A.e("s_mov_b32 m0, s31")
        A.e(f"s_add_u32 s31, s31, {K1_SLOT}")
        A.e("buffer_load_dwordx4 v2, s[8:11], s28 offen lds")
        A.e("buffer_load_dwordx4 v3, s[12:15], s29 offen offset:1024 lds")
        A.e("buffer_load_dwordx4 v3, s[16:19], s29 offen offset:2048 lds")
        if isB:
            A.e("buffer_load_dword v4, s[20:23], s30 offen offset:3072 lds")
            A.e("s_add_u32 s30, s30, 2048")
            A.e("s_and_b32 s30, s30, 65535")
        A.e("s_add_u32 s28, s28, 64")
        A.e("s_and_b32 s28, s28, 2047")
        A.e(f"s_add_u32 s29, s29, {32*pitch}")
        A.e(f"s_cmp_eq_u32 s29, {1024*pitch}")
        A.e("s_cselect_b32 s29, 0, s29")
        A.e("s_cmp_ge_u32 s31, s41")
        A.e(f"s_cselect_b32 s3, {K1_LDS}, 0")
        A.e("s_sub_u32 s31, s31, s3")

    S = [dict(X=[80, 84], W=[88, 92]), dict(X=[96, 100], W=[104, 108])]
    def rdX(t, rt):
        return f"ds_read_b128 {vr(S[t]['X'][rt],4)}, v{5+t} offset:{rt*2*K1_WSLOT}"
    def rdW(t, ct, h):
        return f"ds_read_b64_tr_b16 {vr(S[t]['W'][ct]+2*h,2)}, v7 offset:{t*4*K1_WSLOT + h*K1_WSLOT + ct*1024}"
    def mm(t, rt, ct):
        x, w = S[t]['X'][rt], S[t]['W'][ct]
        if NOMFMA: return
        if os.environ.get("M16"):
            mfma16(A, ACC(rt, ct) + 8*t, w, x); mfma16(A, ACC(rt, ct) + 8*t + 4, x, w); return
        if T == 1 and ct == 1: mfma32(A, ACC(rt, ct), x, w)
        else: mfma32(A, ACC(rt, ct), w, x)

    for s in range(5):
        dma()
    XPF = int(os.environ.get("XPF", "0"))
    npf = 0
    if XPF & 3:
        A.e("s_lshl_b32 s3, s35, 2")
        A.e("s_and_b32 s33, s40, 3")
        A.e("s_add_u32 s3, s3, s33")
        A.e("s_lshl_b32 s3, s3, 3")
        A.e("s_add_u32 s3, s3, s34")
        A.e("s_lshl_b32 s3, s3, 13")
        if XPF & 1:
            A.e("v_lshlrev_b32 v189, 7, v0")
            A.e("buffer_load_dword v188, v189, s[8:11], s3 offen"); npf += 1
        else:
            A.e("v_lshlrev_b32 v189, 6, v0")
            A.e("buffer_load_dword v188, v189, s[8:11], s3 offen"); npf += 1
            A.e("s_add_u32 s3, s3, 4096")
            A.e("buffer_load_dword v188, v189, s[8:11], s3 offen"); npf += 1
    if XPF & 4:
        A.e("s_and_b32 s3, s35, 7")
        A.e("s_lshl_b32 s3, s3, 3")
        A.e("s_add_u32 s3, s3, s34")
        A.e(f"s_mul_i32 s3, s3, {16*pitch}")
        A.e("v_lshrrev_b32 v190, 2, v0")
        A.e(f"v_mul_u32_u24 v190, {pitch}, v190")
        A.e("v_and_b32 v191, 1, v0")
        A.e("v_lshl_add_u32 v190, v191, 7, v190")
        A.e("v_bfe_u32 v191, v0, 1, 1")
        A.e(f"v_lshl_add_u32 v190, v191, {11 if T == 1 else 8}, v190")
        A.e("buffer_load_dword v188, v190, s[12:15], s3 offen offset:1024"); npf += 1
    stamp(A, 1)
    if T <= 1:
        A.e(f"s_mov_b32 s62, {f2u(LOG2E):#x}")
        A.e(f"s_mov_b32 s63, {f2u(LOG2E):#x}")
        A.e(f"s_waitcnt vmcnt({5*D+npf})")
        n = 32 if T == 0 else 16
        for i in range(n):
            A.e(f"v_lshlrev_b32 v{124+i}, 16, v{124+i}")
        for i in range(0, n, 2):
            A.e(f"v_pk_mul_f32 {vr(124+i,2)}, {vr(124+i,2)}, s[62:63]")
        for i in range(0, n, 2):
            A.e(f"v_cvt_pk_bf16_f32 v{WPK+i//2}, v{124+i}, v{124+i+1}")
    A.e(f"s_waitcnt vmcnt({4*D+npf})")
    A.e("s_barrier")
    stamp(A, 2)
    for q in (rdX(0, 0), rdW(0, 0, 0), rdW(0, 0, 1), rdW(0, 1, 0), rdW(0, 1, 1), rdX(0, 1)):
        A.e(q)
    L = f"K1_T{T}_loop"
    A.raw(".p2align 6")
    A.label(L)
    st = A.mark()
    A.e("s_waitcnt lgkmcnt(0)")
    mm(0, 0, 0); A.e(rdX(1, 0)); A.e(rdW(1, 0, 0))
    mm(0, 0, 1); A.e(rdW(1, 0, 1)); A.e(rdW(1, 1, 0))
    mm(0, 1, 0); A.e(rdW(1, 1, 1)); A.e(rdX(1, 1))
    A.e("s_cmp_ge_u32 s32, 28")
    mm(0, 1, 1)
    if isB:
        A.e("ds_read_b128 v[112:115], v8")
        A.e("ds_read_b64_tr_b16 v[116:117], v9")
        A.e(f"ds_read_b64_tr_b16 v[118:119], v9 offset:{K1_WSLOT}")
    A.e(f"s_cbranch_scc1 {L}_tw")
    A.e(f"s_waitcnt vmcnt({3*D})")
    A.label(f"{L}_back")
    A.e("s_barrier")
    A.e("s_add_u32 s43, s43, 1")
    A.e(f"s_cmp_eq_u32 s43, {K1_NS}")
    A.e(f"s_cselect_b32 s33, s64, {K1_SLOT}")
    A.e("s_cselect_b32 s43, 0, s43")
    A.e(f"s_waitcnt lgkmcnt({3 if isB else 0})")
    mm(1, 0, 0)
    A.e("v_add_u32 v5, s33, v5")
    A.e("v_add_u32 v7, s33, v7")
    A.e(rdX(0, 0)); A.e(rdW(0, 0, 0))
    mm(1, 0, 1)
    A.e(rdW(0, 0, 1)); A.e(rdW(0, 1, 0)); A.e(rdW(0, 1, 1)); A.e(rdX(0, 1))
    A.e(f"s_cmp_ge_u32 s32, {0 if NODMA else 27}")
    mm(1, 1, 0)
    A.e("v_add_u32 v6, s33, v6")
    A.e(f"s_cbranch_scc1 {L}_nodma")
    dma()
    A.label(f"{L}_nodma")
    if isB:
        A.e("s_waitcnt lgkmcnt(6)")
        if T == 2: mfma16(A, 120, 116, 112)
        else: mfma16(A, 120, 112, 116)
        A.e("v_add_u32 v8, s33, v8")
        A.e("v_add_u32 v9, s33, v9")
    A.e("s_add_u32 s32, s32, 1")
    A.e("s_cmp_lt_u32 s32, 32")
    mm(1, 1, 1)
    A.e(f"s_cbranch_scc1 {L}")
    A.check_loop(st, L)
    A.e(f"s_branch {L}_done")
    A.label(f"{L}_tw")
    A.e("s_cmp_eq_u32 s32, 28")
    A.e(f"s_cbranch_scc1 {L}_tw2")
    A.e("s_cmp_eq_u32 s32, 29")
    A.e(f"s_cbranch_scc1 {L}_tw1")
    A.e("s_waitcnt vmcnt(0)")
    A.e(f"s_branch {L}_back")
    A.label(f"{L}_tw2")
    A.e(f"s_waitcnt vmcnt({2*D})")
    A.e(f"s_branch {L}_back")
    A.label(f"{L}_tw1")
    A.e(f"s_waitcnt vmcnt({D})")
    A.e(f"s_branch {L}_back")
    A.label(f"{L}_done")
    A.fence()
    stamp(A, 3)
    A.e("s_nop 15")
    A.e("s_waitcnt lgkmcnt(0)")
    if T == 1: k1_epi_kv(A)
    elif T == 0: k1_epi_eq(A)
    else: k1_epi_q(A, T)
    if DBG:
        stamp(A, 4)
        A.e("s_waitcnt vmcnt(0)")
        stamp(A, 5)
        dbg_dump(A, 6)

def pack16(A, base):
    for i in range(8):
        A.e(f"v_cvt_pk_bf16_f32 v{base+i}, v{base+2*i}, v{base+2*i+1}")

def k1_epi_q(A, T):
    isB = T >= 2
    if isB: A.e("s_sub_u32 s3, s40, 12")
    else: A.e("s_mov_b32 s3, s40")
    A.e("s_lshl_b32 s3, s3, 3")
    A.e("s_add_u32 s3, s3, s39")
    A.e("s_lshl_b32 s3, s3, 17")
    A.e("s_lshl_b32 s36, s35, 13")
    A.e("s_add_u32 s3, s3, s36")
    A.e("s_lshl_b32 s36, s38, 12")
    A.e("s_add_u32 s3, s3, s36")
    if isB: A.e(f"s_add_u32 s3, s3, {WS_QB}")
    A.e(f"s_add_u32 s36, s3, {4*131072}")
    A.e("v_lshlrev_b32 v1, 4, v0")
    for rt in range(2):
        for ct in range(2):
            b = ACC(rt, ct)
            pack16(A, b)
            for t in range(2):
                A.e(f"buffer_store_dwordx4 {vr(b+4*t,4)}, v1, s[24:27], s{36 if ct else 3} offen offset:{rt*2048+t*1024}")
    if isB:
        if T == 2:
            c = f2u(LOG2E / 32 ** 0.5)
            for r in range(120, 124):
                A.e(f"v_mul_f32 v{r}, {c:#x}, v{r}")
        A.e("v_cvt_pk_bf16_f32 v120, v120, v121")
        A.e("v_cvt_pk_bf16_f32 v121, v122, v123")
        A.e("v_bfe_u32 v2, v0, 4, 1")
        A.e("v_lshlrev_b32 v2, 9, v2")
        A.e("v_lshl_add_u32 v2, v10, 4, v2")
        A.e("v_lshrrev_b32 v3, 5, v0")
        A.e("v_lshl_add_u32 v2, v3, 3, v2")
        A.e("s_lshl_b32 s3, s35, 2")
        A.e("s_lshr_b32 s36, s34, 1")
        A.e("s_add_u32 s3, s3, s36")
        A.e("s_lshl_b32 s3, s3, 12")
        A.e(f"s_add_u32 s3, s3, {WS_KV + (2048 if T == 3 else 0)}")
        A.e("s_and_b32 s36, s40, 1")
        A.e("s_and_b32 s37, s34, 1")
        a, b_ = (36, 37) if T == 2 else (37, 36)
        A.e(f"s_lshl_b32 s{a}, s{a}, 10")
        A.e(f"s_lshl_b32 s{b_}, s{b_}, 8")
        A.e("s_add_u32 s3, s3, s36")
        A.e("s_add_u32 s3, s3, s37")
        A.e("buffer_store_dwordx2 v[120:121], v2, s[24:27], s3 offen")


def absmax_check(A, Ps, m, slow):
    regs = [p + i for p in Ps for i in range(16)]
    A.e(f"v_max3_f32 v{m}, |v{regs[0]}|, |v{regs[1]}|, |v{regs[2]}|")
    rest = regs[3:]
    while len(rest) >= 2:
        A.e(f"v_max3_f32 v{m}, v{m}, |v{rest[0]}|, |v{rest[1]}|")
        rest = rest[2:]
    if rest: A.e(f"v_max_f32 v{m}, v{m}, |v{rest[0]}|")
    A.e(f"v_cmp_nle_f32 vcc, v{m}, v{m+1}")
    A.e("s_nop 3")
    A.e("s_cmp_lg_u64 vcc, 0")
    A.e(f"s_cbranch_scc1 {slow}")

def true_shift(A, P, U, t0):
    mx, mn, x, y = t0, t0 + 2, t0 + 4, t0 + 5
    A.e(f"v_max3_f32 v{mx}, v{P}, v{P+1}, v{P+2}")
    A.e(f"v_min3_f32 v{mn}, v{P}, v{P+1}, v{P+2}")
    for i in range(3, 15, 2):
        A.e(f"v_max3_f32 v{mx}, v{mx}, v{P+i}, v{P+i+1}")
        A.e(f"v_min3_f32 v{mn}, v{mn}, v{P+i}, v{P+i+1}")
    A.e(f"v_max_f32 v{mx}, v{mx}, v{P+15}")
    A.e(f"v_min_f32 v{mn}, v{mn}, v{P+15}")
    A.e(f"v_mov_b32 v{x}, v{mx}")
    A.e(f"v_mov_b32 v{y}, v{mn}")
    A.e(f"v_permlane32_swap_b32 v{mx}, v{x}")
    A.e(f"v_permlane32_swap_b32 v{mn}, v{y}")
    A.e(f"v_max_f32 v{mx}, v{mx}, v{x}")
    A.e(f"v_min_f32 v{mn}, v{mn}, v{y}")
    for i in range(16):
        A.e(f"v_sub_f32 v{U+i}, v{P+i}, v{mn}")
        A.e(f"v_sub_f32 v{P+i}, v{P+i}, v{mx}")

def k1_epi_eq(A):
    units = [(rt, ct) for ct in range(2) for rt in range(2)]
    P = {u: 80 + 16 * i for i, u in enumerate(units)}
    U = 172
    A.e(f"v_mov_b32 v9, {f2u(SAFE):#x}")
    A.e("s_lshl_b32 s3, s36, 18")
    A.e("s_lshl_b32 s37, s35, 14")
    A.e("s_add_u32 s3, s3, s37")
    A.e("s_lshl_b32 s37, s38, 13")
    A.e("s_add_u32 s3, s3, s37")
    A.e(f"s_add_u32 s37, s3, {4 << 18}")
    A.e("v_lshlrev_b32 v1, 4, v0")
    A.e("v_add_u32 v2, 4096, v1")
    for u in units:
        rt, ct = u
        pack16(A, ACC(rt, ct))
        mfma32(A, P[u], WPK + 8 * ct, ACC(rt, ct), "0")
        mfma32(A, P[u], WPK + 8 * ct + 4, ACC(rt, ct) + 4)
    absmax_check(A, [P[u] for u in units], 8, "K1_eq_slow")
    def tail(u, src):
        rt, ct = u
        p = P[u]
        for half in range(2):
            for i in range(8 * half, 8 * half + 8):
                A.e(f"v_exp_f32 v{U+i}, -v{src+i}")
            for i in range(8 * half, 8 * half + 8):
                A.e(f"v_exp_f32 v{p+i}, v{p+i}")
            o = ACC(rt, ct) + 8 * half
            for i in range(4):
                A.e(f"v_cvt_pk_bf16_f32 v{o+4+i}, v{U+8*half+2*i}, v{U+8*half+2*i+1}")
            for i in range(4):
                A.e(f"v_cvt_pk_bf16_f32 v{o+i}, v{p+8*half+2*i}, v{p+8*half+2*i+1}")
            A.e(f"buffer_store_dwordx4 {vr(o+4,4)}, v{1+rt}, s[24:27], s{37 if ct else 3} offen offset:{2048 + half*1024}")
            A.e(f"buffer_store_dwordx4 {vr(o,4)}, v{1+rt}, s[24:27], s{37 if ct else 3} offen offset:{half*1024}")
    for u in units: tail(u, P[u])
    if DBG:
        stamp(A, 4)
        A.e("s_waitcnt vmcnt(0)")
        stamp(A, 5)
        dbg_dump(A, 6)
    A.e("s_endpgm")
    A.label("K1_eq_slow")
    A.fence()
    for u in units:
        true_shift(A, P[u], U, 2 + 8)
        tail_slow = tail
        tail(u, U)

PHI_BASE = 2 * K1_SLOT
PHI_PITCH = 136
PHI_WAVE = 64 * PHI_PITCH
XB_BASE = PHI_BASE + 8 * PHI_WAVE

def k1_epi_kv(A):
    Pr = [124, 140]
    Ur = [80, 96]
    KV = [156, 172]
    ZS = [112, 116]
    SEL = 120
    A.e(f"v_mov_b32 v9, {f2u(SAFE):#x}")
    for rt in range(2):
        pack16(A, ACC(rt, 0))
        mfma32(A, Pr[rt], WPK, ACC(rt, 0), "0")
        mfma32(A, Pr[rt], WPK + 4, ACC(rt, 0) + 4)
    for rt in range(2):
        pack16(A, ACC(rt, 1))
    A.e(f"s_mul_i32 s3, s34, {PHI_WAVE}")
    A.e(f"s_add_u32 s3, s3, {PHI_BASE}")
    A.e("v_and_b32 v1, 31, v0")
    A.e(f"v_mul_u32_u24 v1, {PHI_PITCH}, v1")
    A.e("v_lshl_add_u32 v1, v13, 3, v1")
    A.e("v_add_u32 v1, s3, v1")
    A.e("v_lshl_add_u32 v2, v13, 2, v12")
    A.e(f"v_mul_u32_u24 v2, {PHI_PITCH}, v2")
    A.e("v_bfe_u32 v3, v0, 4, 1")
    A.e("v_lshl_add_u32 v2, v3, 5, v2")
    A.e("v_lshl_add_u32 v2, v14, 3, v2")
    A.e("v_add_u32 v2, s3, v2")
    A.e("v_lshrrev_b32 v3, 2, v0")
    A.e("v_xor_b32 v3, v3, v0")
    A.e("v_and_b32 v3, 4, v3")
    A.e("v_or_b32 v3, v3, v14")
    A.e("v_cmp_eq_u32 vcc, 0, v3")
    A.e("v_mov_b32 v4, 0x3f803f80")
    A.e("v_mov_b32 v5, 0")
    for i in range(4):
        A.e(f"v_cndmask_b32 v{SEL+i}, v5, v4, vcc")
    absmax_check(A, Pr, 8, "K1_kv_slow")
    def exps(rt, src):
        P, U = Pr[rt], Ur[rt]
        for i in range(16):
            A.e(f"v_exp_f32 v{U+i}, -v{src+i}")
            A.e(f"v_exp_f32 v{P+i}, v{P+i}")
    for rt in range(2): exps(rt, Pr[rt])
    A.label("K1_kv_common")
    A.e("s_nop 0")
    sp = [4, 10]; sn = [6, 14+2]
    sp = [4, 8]; sn = [6, 10]
    for rt in range(2):
        P, U = Pr[rt], Ur[rt]
        A.e(f"v_pk_add_f32 {vr(sp[rt],2)}, {vr(P,2)}, {vr(P+2,2)}")
        A.e(f"v_pk_add_f32 {vr(sn[rt],2)}, {vr(U,2)}, {vr(U+2,2)}")
        for i in range(4, 16, 2):
            A.e(f"v_pk_add_f32 {vr(sp[rt],2)}, {vr(sp[rt],2)}, {vr(P+i,2)}")
            A.e(f"v_pk_add_f32 {vr(sn[rt],2)}, {vr(sn[rt],2)}, {vr(U+i,2)}")
    for rt in range(2):
        A.e(f"v_add_f32 v{sp[rt]}, v{sp[rt]}, v{sp[rt]+1}")
        A.e(f"v_add_f32 v{sn[rt]}, v{sn[rt]}, v{sn[rt]+1}")
    for rt in range(2):
        A.e(f"v_permlane32_swap_b32 v{sp[rt]}, v{sn[rt]}")
    for rt in range(2):
        A.e(f"v_add_f32 v{sp[rt]}, v{sp[rt]}, v{sn[rt]}")
    for rt in range(2):
        A.e(f"v_rcp_f32 v{sp[rt]}, v{sp[rt]}")
    for rt in range(2):
        A.e(f"v_mov_b32 v{sn[rt]}, v{sp[rt]}")
    for rt in range(2):
        A.e(f"v_permlane32_swap_b32 v{sp[rt]}, v{sn[rt]}")
    for rt in range(2):
        P, U = Pr[rt], Ur[rt]
        for q in range(4):
            for i in (4 * q, 4 * q + 2):
                A.e(f"v_pk_mul_f32 {vr(P+i,2)}, {vr(P+i,2)}, {vr(sp[rt],2)} op_sel_hi:[1,0]")
                A.e(f"v_pk_mul_f32 {vr(U+i,2)}, {vr(U+i,2)}, {vr(sn[rt],2)} op_sel_hi:[1,0]")
            for i in (4 * q, 4 * q + 2):
                A.e(f"v_cvt_pk_bf16_f32 v{P+i//2}, v{P+i}, v{P+i+1}")
                A.e(f"v_cvt_pk_bf16_f32 v{U+i//2}, v{U+i}, v{U+i+1}")
            A.e(f"ds_write_b64 v1, {vr(P+2*q,2)} offset:{rt*32*PHI_PITCH + q*16}")
            A.e(f"ds_write_b64 v1, {vr(U+2*q,2)} offset:{rt*32*PHI_PITCH + 64 + q*16}")
    A.e("s_waitcnt lgkmcnt(0)")
    F = lambda ft, rt, t: 80 + ((ft * 2 + rt) * 2 + t) * 4
    for ft in range(2):
        for rt in range(2):
            for t in range(2):
                off = (rt * 32 + 16 * t) * PHI_PITCH + ft * 64
                A.e(f"ds_read_b64_tr_b16 {vr(F(ft,rt,t),2)}, v2 offset:{off}")
                A.e(f"ds_read_b64_tr_b16 {vr(F(ft,rt,t)+2,2)}, v2 offset:{off + 8*PHI_PITCH}")
    A.e("s_lshl_b32 s37, s36, 5")
    A.e("s_lshl_b32 s3, s35, 1")
    A.e("s_add_u32 s37, s37, s3")
    A.e("s_add_u32 s37, s37, s38")
    A.e("s_lshl_b32 s37, s37, 8")
    A.e(f"s_add_u32 s37, s37, {WS_ZP}")
    A.e("v_lshlrev_b32 v6, 2, v0")
    A.e("v_lshlrev_b32 v1, 4, v0")
    A.e("s_lshl_b32 s3, s39, 13")
    A.e(f"s_add_u32 s3, s3, {XB_BASE}")
    A.e("v_add_u32 v2, s3, v1")
    A.e("s_lshl_b32 s3, s36, 4")
    A.e("s_add_u32 s3, s3, s35")
    A.e("s_lshl_b32 s3, s3, 1")
    A.e("s_add_u32 s3, s3, s38")
    A.e("s_lshl_b32 s3, s3, 12")
    A.e(f"s_add_u32 s3, s3, {WS_KVP}")
    A.e("s_mov_b32 vcc_lo, 0")
    A.e("s_mov_b32 vcc_hi, -1")
    n = 0
    for ft in range(2):
        for rt in range(2):
            for t in range(2):
                n += 1
                A.e(f"s_waitcnt lgkmcnt({16 - 2*n})")
                first = "0" if (rt == 0 and t == 0) else None
                mfma32(A, KV[ft], F(ft, rt, t), ACC(rt, 1) + 4 * t, first)
                mfma16(A, ZS[ft], SEL, F(ft, rt, t), first)
    A.e(f"v_cndmask_b32 v4, v{ZS[0]}, v{ZS[1]}, vcc")
    A.e("buffer_store_dword v4, v6, s[24:27], s37 offen")
    A.e("s_cmp_eq_u32 s38, 0")
    A.e("s_nop 7")
    A.e("s_cbranch_scc0 K1_kv_wm1")
    hist = list(A.hist)
    for wm in range(2):
        if wm == 1:
            A.label("K1_kv_wm1")
            A.hist = list(hist)
        keep, send = KV[wm], KV[1 - wm]
        for rq in range(4):
            A.e(f"ds_write_b128 v2, {vr(send+4*rq,4)} offset:{(1-wm)*4096 + rq*1024}")
        A.e("s_waitcnt lgkmcnt(0)")
        A.e("s_barrier")
        for rq in range(4):
            A.e(f"ds_read_b128 {vr(80+4*rq,4)}, v2 offset:{wm*4096 + rq*1024}")
        for rq in range(4):
            A.e(f"s_waitcnt lgkmcnt({3-rq})")
            A.e(f"v_pk_add_f32 {vr(keep+4*rq,2)}, {vr(keep+4*rq,2)}, {vr(80+4*rq,2)}")
            A.e(f"v_pk_add_f32 {vr(keep+4*rq+2,2)}, {vr(keep+4*rq+2,2)}, {vr(80+4*rq+2,2)}")
            A.e(f"buffer_store_dwordx4 {vr(keep+4*rq,4)}, v1, s[24:27], s3 offen offset:{rq*1024}")
        if DBG:
            stamp(A, 4)
            A.e("s_waitcnt vmcnt(0)")
            stamp(A, 5)
            dbg_dump(A, 6)
        A.e("s_endpgm")
    A.label("K1_kv_slow")
    A.fence()
    for rt in range(2):
        true_shift(A, Pr[rt], Ur[rt], 4)
        exps(rt, Ur[rt])
    A.e("s_branch K1_kv_common")
```

```python
from asmlib import *
from gen_k1 import *
import os

K2_CH = 32768
K2_NB = 4
K2_KVS = K2_CH * K2_NB
K2_ZS = K2_KVS + 4096
K2_ZS2 = K2_ZS + 2048
K2_LDS = K2_ZS2 + 256
K2_VGPR = 212

Q = 8
KF = 16
VF = 24
SB = [32, 48]
CM = 64
PF = 80
OA_ = 88
LS = 104
SEL = 108
RL = 112
EQ = RL
KACC = 128
ZP = 132
KT = 136
ZF = 152
NUM = [168, 184]
LD = [200, 204]
T0 = 208
PFD = 207
WPF = int(os.environ.get("WPF", "1"))
K2CH = int(os.environ.get("K2CH", "0"))
X_NOLATE = int(os.environ.get("X_NOLATE", "0"))
X_NOWAIT = int(os.environ.get("X_NOWAIT", "0"))
PRIO = [int(x) for x in os.environ.get("PRIO", "3,3,3,3,2,2,1,0").split(",")] if os.environ.get("PRIO", "1") else None
PRO2 = int(os.environ.get("PRO2", "1"))
X_NODMA = int(os.environ.get("X_NODMA", "0"))
def chstamp(A, lane):
    A.e("s_memtime s[74:75]")
    A.e("s_waitcnt lgkmcnt(0)")
    A.e("s_sub_u32 s76, s74, s70")
    A.e("s_sub_u32 s77, s72, s70")
    A.e("s_and_b32 s76, s76, 0xffff")
    A.e("s_lshl_b32 s77, s77, 16")
    A.e("s_or_b32 s76, s76, s77")
    A.e(f"s_mov_b32 m0, {lane}")
    A.e("s_nop 3")
    A.e(f"v_writelane_b32 v211, s76, m0")

def gen_k2(A, name):
    KIDX[0] = 1
    kernel_header(A, name)
    A.e("s_cmp_ge_u32 s2, 256")
    A.e("s_cbranch_scc1 K2_end")
    stamp(A, 0)
    if DBG: A.e("s_memrealtime s[84:85]")
    A.e("s_load_dwordx2 s[60:61], s[0:1], 88")
    if WPF:
        A.e("s_load_dwordx2 s[44:45], s[0:1], 24")
        A.e("s_load_dwordx2 s[46:47], s[0:1], 64")
    A.e("v_lshrrev_b32 v1, 6, v0")
    A.e("v_and_b32 v0, 63, v0")
    A.e("v_readfirstlane_b32 s34, v1")
    A.e("s_and_b32 s3, s2, 7")
    A.e("s_lshr_b32 s36, s2, 3")
    A.e("s_lshl_b32 s35, s3, 2")
    A.e("s_lshr_b32 s37, s36, 3")
    A.e("s_add_u32 s35, s35, s37")
    A.e("s_and_b32 s36, s36, 7")
    A.e("s_lshl_b32 s36, s36, 3")
    A.e("v_lshlrev_b32 v1, 4, v0")
    A.e("s_add_u32 s36, s36, s34")
    A.e("s_lshl_b32 s31, s34, 12")
    A.e(f"s_add_u32 s28, s31, {WS_KV}")
    A.e("s_lshl_b32 s38, s35, 17")
    A.e("s_lshl_b32 s39, s36, 11")
    A.e("s_add_u32 s38, s38, s39")
    A.e(f"s_add_u32 s39, s38, {WS_QB}")
    A.e("s_lshl_b32 s38, s38, 1")
    A.e("s_mov_b32 s26, %d" % WS_BYTES)
    A.e("s_mov_b32 s27, 0x00020000")
    A.e("s_mov_b32 m0, s31")
    A.e("s_waitcnt lgkmcnt(0)")
    A.e("s_mov_b32 s24, s60")
    A.e("s_and_b32 s25, s61, 0xffff")
    def dma1(i):
        A.e(f"buffer_load_dwordx4 v1, s[24:27], s28 offen offset:{i*1024} lds")
    def dma_next():
        A.e(f"s_add_u32 s31, s31, {K2_CH}")
        A.e(f"s_add_u32 s28, s28, {K2_CH}")
        A.e(f"s_and_b32 s31, s31, {K2_CH*K2_NB - 1}")
        A.e("s_mov_b32 m0, s31")
    for i in range(4): dma1(i)
    A.e(f"buffer_load_dwordx4 {vr(Q,4)}, v1, s[24:27], s39 offen")
    A.e(f"buffer_load_dwordx4 {vr(Q+4,4)}, v1, s[24:27], s39 offen offset:1024")
    A.e("s_lshl_b32 s37, s34, 10")
    A.e("s_lshl_b32 s57, s35, 13")
    A.e("s_add_u32 s57, s57, s37")
    A.e(f"s_add_u32 s57, s57, {WS_ZP}")
    if not PRO2:
        for c in range(2):
            dma_next()
            for i in range(4): dma1(i)
        A.e(f"buffer_load_dwordx4 {vr(ZP,4)}, v1, s[24:27], s57 offen")
    A.e("s_lshl_b32 s68, s35, 17")
    A.e("s_add_u32 s68, s68, s37")
    A.e(f"s_add_u32 s68, s68, {WS_KVP}")
    A.e("s_movk_i32 s69, 8192")
    A.e("v_lshlrev_b32 v2, 2, v0")
    if not K2CH: stamp(A, 1)
    A.e("v_lshrrev_b32 v7, 5, v0")
    A.e("v_lshrrev_b32 v3, 2, v0")
    A.e("v_xor_b32 v3, v3, v0")
    A.e("v_and_b32 v3, 4, v3")
    A.e("v_and_b32 v4, 3, v0")
    A.e("v_or_b32 v3, v3, v4")
    A.e("v_cmp_eq_u32 vcc, 0, v3")
    A.e("v_cmp_eq_u32 s[66:67], 1, v3")
    A.e("v_mov_b32 v4, 0x3f803f80")
    A.e("v_mov_b32 v5, 0")
    for i in range(4):
        A.e(f"v_cndmask_b32 v{SEL+i}, v5, v4, vcc")
    for i in range(16):
        A.e(f"v_mov_b32 v{OA_+i}, 0")
        A.e(f"v_mov_b32 v{RL+i}, 0")
    for i in range(4):
        A.e(f"v_mov_b32 v{LS+i}, 0")
        A.e(f"v_mov_b32 v{PF+4+i}, 0")
        A.e(f"v_mov_b32 v{VF+4+i}, 0")
        A.e(f"v_mov_b32 v{KACC+i}, 0")
    A.e("v_and_b32 v6, 15, v0")
    A.e("v_lshlrev_b32 v6, 4, v6")
    A.e("v_lshrrev_b32 v3, 4, v0")
    A.e("v_lshl_add_u32 v6, v3, 2, v6")
    A.e("s_lshl_b32 s3, s34, 8")
    A.e(f"s_add_u32 s3, s3, {K2_ZS}")
    A.e("v_add_u32 v6, s3, v6")
    A.e("s_and_b32 s55, s34, 3")
    if WPF:
        A.e("s_cmp_lt_u32 s2, 128")
        A.e("s_cselect_b32 s44, s44, s46")
        A.e("s_cselect_b32 s45, s45, s47")
        srd(A, 48, 44, 2097152)
        A.e("s_and_b32 s3, s2, 127")
        A.e("s_lshl_b32 s3, s3, 14")
        A.e("s_lshl_b32 s37, s34, 11")
        A.e("s_add_u32 s52, s3, s37")
    A.e("s_mov_b32 s32, 0")
    A.e("s_lshr_b32 s3, s34, 1")
    A.e("s_lshl_b32 s3, s3, 10")
    A.e("s_and_b32 s37, s34, 1")
    A.e("s_lshl_b32 s37, s37, 3")
    A.e("s_add_u32 s3, s3, s37")
    A.e(f"s_add_u32 s53, s3, {K2_KVS}")
    A.e("s_lshl_b32 s40, s36, 16")
    A.e("s_lshl_b32 s3, s35, 11")
    A.e("s_add_u32 s40, s40, s3")
    A.e(f"s_add_u32 s41, s40, {WS_OB}")
    A.e(f"s_add_u32 s40, s40, {WS_OA}")
    A.e("v_mov_b32 v5, v1")
    A.e(f"v_add_u32 v4, {K2_CH}, v1")
    if PRO2:
        dma_next()
        for i in range(4): dma1(i)
        A.e("s_waitcnt vmcnt(4)")
        A.e("s_barrier")
        dma_next()
        for i in range(4): dma1(i)
        A.e(f"buffer_load_dwordx4 {vr(ZP,4)}, v1, s[24:27], s57 offen")
    else:
        A.e("s_waitcnt vmcnt(9) lgkmcnt(0)")
        A.e("s_barrier")
    if not K2CH: stamp(A, 2)
    A.e(f"ds_read_b128 {vr(KF,4)}, v5")
    A.e(f"ds_read_b128 {vr(KF+4,4)}, v5 offset:1024")
    A.e(f"ds_read_b128 {vr(VF,4)}, v5 offset:2048")
    A.e("s_waitcnt lgkmcnt(2)")
    mfma32(A, SB[0], KF, Q, "0")
    A.e("s_waitcnt lgkmcnt(1)")
    mfma32(A, SB[0], KF + 4, Q + 4)
    A.e(f"ds_read_b128 {vr(KF,4)}, v5 offset:4096")
    A.e(f"ds_read_b128 {vr(KF+4,4)}, v5 offset:{4096+1024}")
    S = SB[0]
    A.e(f"v_max3_f32 v{T0}, v{S}, v{S+1}, v{S+2}")
    for i in range(3, 15, 2):
        A.e(f"v_max3_f32 v{T0}, v{T0}, v{S+i}, v{S+i+1}")
    A.e(f"v_max_f32 v{T0}, v{T0}, v{S+15}")
    A.e(f"v_mov_b32 v{T0+1}, v{T0}")
    A.e(f"v_permlane32_swap_b32 v{T0}, v{T0+1}")
    A.e(f"v_max_f32 v{T0}, v{T0}, v{T0+1}")
    A.e(f"v_sub_f32 v{CM}, 0, v{T0}")
    for i in range(1, 16):
        A.e(f"v_mov_b32 v{CM+i}, v{CM}")
    for i in range(0, 16, 2):
        A.e(f"v_pk_add_f32 {vr(S+i,2)}, {vr(S+i,2)}, {vr(CM,2)}")
    A.e("s_waitcnt lgkmcnt(0)")

    A.raw(".p2align 6")
    A.label("K2_chunk")
    st = A.mark()
    if K2CH: chstamp(A, "s32")
    if PRIO: A.e(f"s_setprio {PRIO[0]}")
    A.e("s_sub_u32 s3, s32, 1")
    A.e("s_cmp_ge_u32 s3, 5")
    A.e("s_cbranch_scc1 K2_wA")
    A.e("s_waitcnt vmcnt(8) lgkmcnt(0)")
    A.label("K2_bar")
    A.e("s_barrier")
    A.label("K2_go")
    if K2CH: A.e("s_memtime s[72:73]")
    A.e("s_cmp_eq_u32 s32, 4")
    A.e("s_cselect_b64 vcc, -1, 0")
    A.e("s_cselect_b32 s68, s38, s68")
    A.e("s_cselect_b32 s69, 1024, s69")
    dma_next()
    A.e("s_mov_b32 s54, s55")
    for j in range(8):
        k2_tile(A, j, dma1)
    A.e("v_mov_b32 v5, v4")
    A.e(f"v_add_u32 v4, {K2_CH}, v4")
    A.e(f"v_and_b32 v4, {K2_CH*K2_NB - 1}, v4")
    A.e("s_add_u32 s32, s32, 1")
    A.e("s_cmp_lt_u32 s32, 8")
    A.e("s_cbranch_scc1 K2_chunk")
    A.check_loop(st, "K2")
    mfma32(A, OA_, VF + 4, PF + 4)
    mfma16(A, LS, SEL, PF + 4)
    if K2CH: chstamp(A, "0")
    else: stamp(A, 3)
    A.e(f"v_mov_b32 v3, {f2u(2.0**60):#x}")
    A.e(f"v_cmp_nlt_f32 vcc, v{LS}, v3")
    A.e(f"v_rcp_f32 v{T0}, v{LS}")
    A.e("s_nop 3")
    A.e("s_cmp_eq_u64 vcc, 0")
    A.e("s_cbranch_scc0 K2_fallback")
    A.label("K2_fin")
    for t in range(2):
        for i in range(8 * t, 8 * t + 8, 2):
            A.e(f"v_pk_mul_f32 {vr(OA_+i,2)}, {vr(OA_+i,2)}, {vr(T0,2)} op_sel_hi:[1,0]")
        for i in range(8 * t, 8 * t + 8, 2):
            A.e(f"v_cvt_pk_bf16_f32 v{OA_+i//2}, v{OA_+i}, v{OA_+i+1}")
        A.e(f"buffer_store_dwordx4 {vr(OA_+4*t,4)}, v1, s[24:27], s41 offen offset:{1024*t}")
    if K2CH:
        A.e(f"s_cmp_lg_u32 s2, {K2CH-1}")
        A.e("s_cbranch_scc1 K2_end")
        A.e("s_load_dwordx2 s[88:89], s[0:1], 80")
        A.e("s_waitcnt lgkmcnt(0)")
        srd(A, 92, 88, 256)
        A.e("s_lshl_b32 s3, s34, 5")
        A.e("s_mov_b64 exec, 0xff")
        A.e("buffer_store_dword v211, v2, s[92:95], s3 offen")
    elif DBG:
        stamp(A, 4)
        A.e("s_waitcnt vmcnt(0)")
        stamp(A, 5)
        dbg_dump(A, 6)
    A.e("s_endpgm")

    A.label("K2_wA")
    A.fence()
    A.e("s_cmp_eq_u32 s32, 7")
    A.e("s_cbranch_scc1 K2_go")
    A.e("s_waitcnt vmcnt(5)")
    A.e("s_cmp_eq_u32 s32, 0")
    A.e("s_cbranch_scc1 K2_bar")
    A.e("s_waitcnt vmcnt(0)")
    A.e("s_branch K2_bar")
    for j in range(4):
        A.label(f"K2_burst{j}")
        A.fence()
        A.e("s_cmp_ge_u32 s32, 5")
        A.e(f"s_cbranch_scc1 K2_late{j}")
        for m in range(0 if X_NODMA else 4): dma1(m)
        A.e("s_add_u32 s54, s54, 4")
        A.e(f"s_branch K2_ret{j}")
        A.label(f"K2_late{j}")
        A.e("s_cmp_eq_u32 s32, 6")
        A.e(f"s_cbranch_scc1 K2_blkZ{j}")
        A.e("s_cmp_eq_u32 s32, 7")
        A.e(f"s_cbranch_scc1 K2_blkF{j}")
        A.e(f"v_add_u32 v3, {K2_KVS}, v1")
        for i in range(4):
            A.e(f"ds_read_b128 {vr(KT+4*i,4)}, v3 offset:{i*1024}")
        A.e(f"v_add_u32 v3, {K2_ZS}, v2")
        for i in range(8):
            A.e(f"ds_read_b32 v{ZF+i}, v3 offset:{i*256}")
        A.e("s_add_u32 s54, s54, 4")
        if WPF:
            A.e("v_lshlrev_b32 v3, 5, v0")
            A.e(f"buffer_load_dword v{PFD}, v3, s[48:51], s52 offen")
        A.e(f"s_branch K2_ret{j}")
        A.label(f"K2_blkZ{j}")
        A.fence()
        def M(ft, t): mfma32(A, NUM[ft], KT + 4 * (ft * 2 + t), EQ + 4 * (ft * 2 + t), "0" if t == 0 else None)
        for i in range(16):
            A.e(f"v_cvt_pk_bf16_f32 v{ZF+i}, v{ZF+2*i}, v{ZF+2*i+1}")
            if i == 3: M(1, 0)
            if i == 11: M(1, 1)
        for t in range(2):
            M(0, t)
            for ft in range(2):
                i = ft * 2 + t
                for r in range(4):
                    A.e(f"v_cndmask_b32 v{ZF+4*i+r}, v{SEL}, v{ZF+4*i+r}, s[66:67]")
        for t in range(2):
            for ft in range(2):
                i = ft * 2 + t
                mfma16(A, LD[ft], ZF + 4 * i, EQ + 4 * i, "0" if t == 0 else None)
        A.e(f"s_branch K2_ret{j}")
        A.label(f"K2_blkF{j}")
        A.fence()
        a_, b_ = LD[0], LD[1]
        A.e(f"v_rcp_f32 v{a_}, v{a_}")
        A.e(f"v_rcp_f32 v{b_}, v{b_}")
        A.e(f"v_mov_b32 v{T0}, {f2u(1e-6):#x}")
        A.e(f"v_fmac_f32 v{T0}, v{a_}, v{a_+1}")
        A.e(f"v_fmac_f32 v{T0}, v{b_}, v{b_+1}")
        A.e(f"v_rcp_f32 v{T0}, v{T0}")
        A.e(f"v_mul_f32 v{a_}, v{a_}, v{T0}")
        A.e(f"v_mul_f32 v{b_}, v{b_}, v{T0}")
        for t in range(2):
            for i in range(8 * t, 8 * t + 8, 2):
                A.e(f"v_pk_mul_f32 {vr(NUM[0]+i,2)}, {vr(NUM[0]+i,2)}, {vr(a_,2)} op_sel_hi:[1,0]")
            for i in range(8 * t, 8 * t + 8, 2):
                A.e(f"v_pk_fma_f32 {vr(NUM[0]+i,2)}, {vr(NUM[1]+i,2)}, {vr(b_,2)}, {vr(NUM[0]+i,2)} op_sel_hi:[1,0,1]")
            for i in range(8 * t, 8 * t + 8, 2):
                A.e(f"v_cvt_pk_bf16_f32 v{NUM[0]+i//2}, v{NUM[0]+i}, v{NUM[0]+i+1}")
            A.e(f"buffer_store_dwordx4 {vr(NUM[0]+4*t,4)}, v1, s[24:27], s40 offen offset:{1024*t}")
        A.e(f"s_branch K2_ret{j}")
    for j in range(4, 8):
        A.label(f"K2_burst{j}")
        A.fence()
        A.e("s_cmp_eq_u32 s32, 5")
        A.e(f"s_cbranch_scc1 K2_burstZ{j}")
        if not X_NOWAIT: A.e("s_waitcnt vmcnt(4)")
        for m in range(0 if X_NOLATE else 4):
            A.e(f"v_pk_add_f32 {vr(KACC,2)}, {vr(KACC,2)}, {vr(RL+4*m,2)}")
            A.e(f"v_pk_add_f32 {vr(KACC+2,2)}, {vr(KACC+2,2)}, {vr(RL+4*m+2,2)}")
            A.e(f"buffer_load_dwordx4 {vr(RL+4*m,4)}, v1, s[24:27], s68 offen")
            A.e("s_add_u32 s68, s68, s69")
        A.e(f"s_cbranch_vccz K2_ret{j}")
        A.e(f"v_permlane32_swap_b32 v{ZP}, v{ZP+2}")
        A.e(f"v_permlane32_swap_b32 v{ZP+1}, v{ZP+3}")
        A.e(f"v_cvt_pk_bf16_f32 v{KACC}, v{KACC}, v{KACC+1}")
        A.e(f"v_cvt_pk_bf16_f32 v{KACC+1}, v{KACC+2}, v{KACC+3}")
        A.e(f"v_add_f32 v{ZP}, v{ZP}, v{ZP+2}")
        A.e(f"v_add_f32 v{ZP+1}, v{ZP+1}, v{ZP+3}")
        A.e("v_add_u32 v3, s53, v1")
        A.e(f"ds_write_b64 v3, {vr(KACC,2)}")
        A.e(f"v_permlane16_swap_b32 v{ZP}, v{ZP+1}")
        A.e(f"v_add_f32 v{ZP}, v{ZP}, v{ZP+1}")
        A.e(f"ds_write_b32 v6, v{ZP}")
        A.e(f"s_branch K2_ret{j}")
        A.label(f"K2_burstZ{j}")
        A.fence()
        for i in range(0, 8, 2):
            A.e(f"v_add_f32 v{ZF+i}, v{ZF+i}, v{ZF+i+1}")
        A.e(f"v_add_f32 v{ZF}, v{ZF}, v{ZF+2}")
        A.e(f"v_add_f32 v{ZF+4}, v{ZF+4}, v{ZF+6}")
        A.e(f"v_add_u32 v3, {K2_ZS2}, v2")
        A.e(f"v_add_f32 v{ZF}, v{ZF}, v{ZF+4}")
        A.e(f"ds_write_b32 v3, v{ZF}")
        A.e("v_lshlrev_b32 v3, 4, v7")
        A.e(f"v_add_u32 v3, {K2_ZS2}, v3")
        for i in range(8):
            A.e(f"ds_read_b128 {vr(ZF+4*i,4)}, v3 offset:{i*32}")
        A.e(f"s_branch K2_ret{j}")
    A.label("K2_fallback")
    A.fence()
    A.e("s_waitcnt vmcnt(0) lgkmcnt(0)")
    A.e(f"s_mov_b32 s28, {WS_KV}")
    A.e(f"v_mov_b32 v{T0}, 0xff800000")
    A.label("K2_fb1")
    st = A.mark()
    A.e(f"buffer_load_dwordx4 {vr(KF,4)}, v1, s[24:27], s28 offen")
    A.e(f"buffer_load_dwordx4 {vr(KF+4,4)}, v1, s[24:27], s28 offen offset:1024")
    A.e("s_add_u32 s28, s28, 4096")
    A.e("s_waitcnt vmcnt(0)")
    mfma32(A, SB[0], KF, Q, "0")
    mfma32(A, SB[0], KF + 4, Q + 4)
    for i in range(0, 16, 2):
        A.e(f"v_max3_f32 v{T0}, v{T0}, v{SB[0]+i}, v{SB[0]+i+1}")
    A.e(f"s_cmp_lt_u32 s28, {WS_KV + 262144}")
    A.e("s_cbranch_scc1 K2_fb1")
    A.check_loop(st, "fb1")
    A.e(f"v_mov_b32 v{T0+1}, v{T0}")
    A.e(f"v_permlane32_swap_b32 v{T0}, v{T0+1}")
    A.e(f"v_max_f32 v{T0}, v{T0}, v{T0+1}")
    for i in range(16):
        A.e(f"v_sub_f32 v{CM+i}, 0, v{T0}")
        A.e(f"v_mov_b32 v{OA_+i}, 0")
    for i in range(4):
        A.e(f"v_mov_b32 v{LS+i}, 0")
    A.e(f"s_mov_b32 s28, {WS_KV}")
    A.label("K2_fb2")
    st = A.mark()
    for i in range(4):
        A.e(f"buffer_load_dwordx4 {vr(KF+4*i,4)}, v1, s[24:27], s28 offen offset:{i*1024}")
    A.e("s_add_u32 s28, s28, 4096")
    A.e("s_waitcnt vmcnt(0)")
    mfma32(A, SB[0], KF, Q, CM)
    mfma32(A, SB[0], KF + 4, Q + 4)
    for i in range(16):
        A.e(f"v_exp_f32 v{SB[0]+i}, v{SB[0]+i}")
    for i in range(8):
        A.e(f"v_cvt_pk_bf16_f32 v{PF+i}, v{SB[0]+2*i}, v{SB[0]+2*i+1}")
    mfma32(A, OA_, VF, PF)
    mfma32(A, OA_, VF + 4, PF + 4)
    mfma16(A, LS, SEL, PF)
    mfma16(A, LS, SEL, PF + 4)
    A.e(f"s_cmp_lt_u32 s28, {WS_KV + 262144}")
    A.e("s_nop 7")
    A.e("s_cbranch_scc1 K2_fb2")
    A.check_loop(st, "fb2")
    A.e("s_nop 15")
    A.e(f"v_rcp_f32 v{T0}, v{LS}")
    A.e("s_nop 1")
    A.e("s_branch K2_fin")
    A.label("K2_end")
    A.e("s_endpgm")

def k2_tile(A, j, dma1):
    S, N = SB[j & 1], SB[(j + 1) & 1]
    def ex(a, b):
        for i in range(a, b): A.e(f"v_exp_f32 v{S+i}, v{S+i}")
    def cv(a, b):
        for i in range(a, b): A.e(f"v_cvt_pk_bf16_f32 v{PF+i}, v{S+2*i}, v{S+2*i+1}")
    def rd(reg, t, off):
        r, o = ("v5", t * 4096) if t < 8 else ("v4", (t - 8) * 4096)
        A.e(f"ds_read_b128 {vr(reg,4)}, {r} offset:{o+off}")
    if PRIO and j > 0 and PRIO[j] != PRIO[j - 1]: A.e(f"s_setprio {PRIO[j]}")
    mfma32(A, N, KF, Q, CM); rd(KF, j + 2, 0); ex(0, 4)
    mfma32(A, OA_, VF + 4, PF + 4); rd(VF + 4, j, 3072); ex(4, 8)
    mfma32(A, N, KF + 4, Q + 4); rd(KF + 4, j + 2, 1024); cv(0, 4); ex(8, 10)
    mfma16(A, LS, SEL, PF + 4); A.e("s_waitcnt lgkmcnt(3)")
    ex(10, 12)
    mfma32(A, OA_, VF, PF); rd(VF, j + 1, 2048)
    A.e(f"s_cmp_eq_u32 s54, {j}")
    A.e(f"s_cbranch_scc1 K2_burst{j}")
    A.label(f"K2_ret{j}")
    ex(12, 16)
    mfma16(A, LS, SEL, PF); A.e("s_waitcnt lgkmcnt(1)")
    cv(4, 8)
```

```python
from asmlib import *
import struct

WS_EQ = 0; WS_QB = 8 << 20; WS_KV = 12 << 20; WS_KVP = 13 << 20; WS_ZP = 17 << 20
WS_OA = 18 << 20; WS_OB = 22 << 20; WS_BYTES = 26 << 20
SAFE = 60.0
LOG2E = 1.4426950408889634
def f2u(x): return struct.unpack("<I", struct.pack("<f", x))[0]

K1_WSLOT = 3328
K1_SLOT = 8 * K1_WSLOT
K1_NS = 6
K1_LDS = K1_SLOT * K1_NS
K1_VGPR = 192

import os
DBG = int(os.environ.get("K1DBG", "0"))
TL = int(os.environ.get("TL", "0"))
KIDX = [0]
NODMA = int(os.environ.get("NODMA", "0"))
NOMFMA = int(os.environ.get("NOMFMA", "0"))
NOLDS = int(os.environ.get("NOLDS", "0"))
def stamp(A, i):
    if DBG:
        A.e(f"s_memtime s[{70+2*i}:{71+2*i}]")
def dbg_dump(A, n):
    if not DBG: return
    if TL:
        k = KIDX[0]
        A.e("s_memrealtime s[86:87]")
        A.e("s_load_dwordx2 s[88:89], s[0:1], 80")
        A.e("s_waitcnt lgkmcnt(0)")
        srd(A, 92, 88, 256, 512 * (TL - 1 - k))
        L = A.newlabel("dbgskip")
        A.e("s_cmp_lg_u32 s34, 0")
        A.e(f"s_cbranch_scc1 {L}")
        A.e("s_and_b32 s3, s2, 127")
        A.e("s_cmp_lg_u32 s3, 77")
        A.e(f"s_cbranch_scc1 {L}")
        A.e("s_lshr_b32 s3, s2, 7")
        A.e("s_lshl_b32 s3, s3, 3")
        A.e("v_mov_b32 v1, 0")
        A.e("v_mov_b32 v2, s84")
        A.e("v_mov_b32 v3, s86")
        A.e("s_mov_b64 exec, 1")
        A.e(f"buffer_store_dwordx2 v[2:3], v1, s[92:95], s3 offen offset:{16*k} sc1")
        A.label(L)
        return
    L = A.newlabel("dbgskip")
    A.e("s_memrealtime s[86:87]")
    A.e("s_waitcnt lgkmcnt(0)")
    A.e("s_lshr_b32 s3, s2, 3")
    A.e(f"s_cmp_lg_u32 s3, {DBG-1}")
    A.e(f"s_cbranch_scc1 {L}")
    A.e("s_cmp_lg_u32 s34, 0")
    A.e(f"s_cbranch_scc1 {L}")
    A.e("s_load_dwordx2 s[88:89], s[0:1], 80")
    A.e("s_waitcnt lgkmcnt(0)")
    srd(A, 92, 88, 256)
    A.e("s_and_b32 s3, s2, 7")
    A.e("s_lshl_b32 s3, s3, 5")
    A.e("v_mov_b32 v1, 0")
    for i in range(1, n):
        A.e(f"s_sub_u32 s{70+2*i}, s{70+2*i}, s70")
        A.e(f"v_mov_b32 v2, s{70+2*i}")
        A.e(f"buffer_store_dword v2, v1, s[92:95], s3 offen offset:{4*i}")
    A.e("s_sub_u32 s86, s86, s84")
    A.e("v_mov_b32 v2, s86")
    A.e(f"buffer_store_dword v2, v1, s[92:95], s3 offen offset:28")
    A.label(L)

def gen_k1(A, name):
    KIDX[0] = 0
    kernel_header(A, name)
    Lend = "K1_end"
    A.e("s_cmp_ge_u32 s2, 256")
    A.e(f"s_cbranch_scc1 {Lend}")
    stamp(A, 0)
    if DBG: A.e("s_memrealtime s[84:85]")
    A.e("s_load_dwordx16 s[44:59], s[0:1], 0")
    A.e("s_load_dwordx2 s[60:61], s[0:1], 88")
    A.e("v_lshrrev_b32 v1, 6, v0")
    A.e("v_and_b32 v0, 63, v0")
    A.e("v_readfirstlane_b32 s34, v1")
    A.e("s_and_b32 s3, s2, 7")
    A.e("s_lshr_b32 s36, s2, 3")
    A.e("s_and_b32 s35, s3, 1")
    A.e("s_lshl_b32 s35, s35, 3")
    A.e("s_and_b32 s37, s36, 7")
    A.e("s_add_u32 s35, s35, s37")
    A.e("s_lshr_b32 s40, s3, 1")
    A.e("s_lshl_b32 s40, s40, 2")
    A.e("s_lshr_b32 s37, s36, 3")
    A.e("s_add_u32 s40, s40, s37")
    if int(os.environ.get("NTPERM", "1")):
        perm = [0, 1, 4, 5, 2, 6, 7, 8, 3, 9, 10, 11, 12, 13, 14, 15]
        tab = sum(p << (4 * i) for i, p in enumerate(perm))
        A.e(f"s_mov_b32 s36, {tab & 0xffffffff:#x}")
        A.e(f"s_mov_b32 s37, {tab >> 32:#x}")
        A.e("s_lshl_b32 s40, s40, 2")
        A.e("s_lshr_b64 s[36:37], s[36:37], s40")
        A.e("s_and_b32 s40, s36, 15")
    A.e("v_bfe_u32 v12, v0, 2, 2")
    A.e("v_and_b32 v14, 3, v0")
    A.e("v_lshrrev_b32 v2, 2, v0")
    A.e("s_lshl_b32 s3, s35, 7")
    A.e("s_lshl_b32 s37, s34, 4")
    A.e("s_add_u32 s3, s3, s37")
    A.e("v_add_u32 v2, s3, v2")
    A.e("v_lshlrev_b32 v2, 11, v2")
    A.e("v_bfe_u32 v15, v0, 4, 2")
    A.e("v_xor_b32 v15, v15, v14")
    A.e("v_lshl_add_u32 v2, v15, 4, v2")
    A.e("v_lshrrev_b32 v3, 4, v0")
    A.e("v_lshlrev_b32 v3, 6, v3")
    A.e("v_lshl_add_u32 v3, v14, 4, v3")
    A.e("s_lshl_b32 s3, s34, 2")
    A.e("v_add_u32 v1, s3, v12")
    A.e(f"s_mul_i32 s31, s34, {K1_WSLOT}")
    A.e(f"s_add_u32 s41, s31, {K1_LDS}")
    A.e("s_mov_b32 s28, 0")
    A.e("s_mov_b32 s29, 0")
    A.e("s_mov_b32 s30, 0")
    A.e("s_cmp_lt_u32 s40, 4")
    A.e("s_cbranch_scc1 K1_T0")
    A.e("s_cmp_lt_u32 s40, 12")
    A.e("s_cbranch_scc1 K1_T1")
    A.e("s_cmp_lt_u32 s40, 14")
    A.e("s_cbranch_scc1 K1_T2")
    A.e("s_branch K1_T3")
    hist = list(A.hist)
    for T in range(4):
        A.label(f"K1_T{T}")
        A.hist = list(hist)
        k1_type(A, T)
        A.e("s_endpgm")
    A.label(Lend)
    A.e("s_endpgm")

def k1_late_setup(A):
    A.e("s_lshr_b32 s38, s34, 2")
    A.e("s_and_b32 s39, s34, 3")
    A.e("v_and_b32 v10, 15, v0")
    A.e("v_lshlrev_b32 v5, 6, v10")
    A.e("v_bfe_u32 v11, v0, 4, 1")
    A.e(f"v_mul_u32_u24 v15, {K1_WSLOT}, v11")
    A.e("v_add_u32 v5, v5, v15")
    A.e(f"s_mul_i32 s3, s38, {4*K1_WSLOT}")
    A.e("v_add_u32 v5, s3, v5")
    A.e("v_xor_b32 v7, v13, v12")
    A.e("v_xor_b32 v15, 2, v7")
    A.e("v_lshl_add_u32 v6, v15, 4, v5")
    A.e("v_lshl_add_u32 v5, v7, 4, v5")
    A.e(f"v_mul_u32_u24 v7, {2*K1_WSLOT}, v13")
    A.e("v_lshl_add_u32 v7, v12, 6, v7")
    A.e("v_lshl_add_u32 v7, v11, 5, v7")
    A.e("v_lshl_add_u32 v7, v14, 3, v7")
    A.e("s_lshl_b32 s3, s39, 8")
    A.e("s_add_u32 s3, s3, 1024")
    A.e("v_add_u32 v7, s3, v7")
    A.e("s_mov_b32 s32, 0")
    A.e("s_mov_b32 s43, 0")
    A.e("s_mov_b32 s65, 0")
    A.e(f"s_mov_b32 s64, {(-5*K1_SLOT) & 0xffffffff}")
    for r in range(16, 80):
        A.e(f"v_mov_b32 v{r}, 0")
    srd(A, 24, 60, WS_BYTES)

ACC = lambda rt, ct: 16 + (rt * 2 + ct) * 16
WPK = 156

def k1_type(A, T):
    isB = T >= 2
    pitch = 2048 if isB else 6144
    wbytes = 1024 * pitch
    D = 4 if isB else 3
    xptr = 52 if isB else 44
    wptr = 54 if isB else 46
    if T == 0:
        A.e("s_lshl_b32 s42, s40, 9")
        A.e("s_add_u32 s37, s42, 256")
    elif T == 1:
        A.e("s_sub_u32 s3, s40, 4")
        A.e("s_lshl_b32 s3, s3, 8")
        A.e("s_add_u32 s42, s3, 2048")
        A.e("s_add_u32 s37, s3, 4096")
    else:
        A.e("s_sub_u32 s3, s40, 12")
        A.e("s_lshl_b32 s42, s3, 9")
        A.e("s_add_u32 s37, s42, 256")
    A.e(f"v_mul_u32_u24 v1, {pitch}, v1")
    A.e("v_add_u32 v3, v3, v1")
    if isB:
        A.e("s_lshl_b32 s3, s34, 8")
        A.e("v_lshl_add_u32 v4, v0, 2, s3")
    A.e("s_waitcnt lgkmcnt(0)")
    srd(A, 8, xptr, 2048 * 2048)
    for (d, cb, off) in ((12, 42, 1024), (16, 37, 2048)):
        A.e(f"s_add_u32 s{d}, s{wptr}, s{cb}")
        A.e(f"s_addc_u32 s{d+1}, s{wptr+1}, 0")
        A.e(f"s_sub_u32 s{d}, s{d}, {off}")
        A.e(f"s_subb_u32 s{d+1}, s{d+1}, 0")
        A.e(f"s_and_b32 s{d+1}, s{d+1}, 0xffff")
        A.e(f"s_sub_u32 s{d+2}, {wbytes + off}, s{cb}")
        A.e(f"s_mov_b32 s{d+3}, 0x00020000")
    if isB:
        srd(A, 20, 56 if T == 2 else 58, 65536 + 3072, -3072)

    def dma(first=False):
        A.e("s_mov_b32 m0, s31")
        A.e(f"s_add_u32 s31, s31, {K1_SLOT}")
        A.e("buffer_load_dwordx4 v2, s[8:11], s28 offen lds")
        A.e("buffer_load_dwordx4 v3, s[12:15], s29 offen offset:1024 lds")
        A.e("buffer_load_dwordx4 v3, s[16:19], s29 offen offset:2048 lds")
        if isB:
            A.e("buffer_load_dword v4, s[20:23], s30 offen offset:3072 lds")
            A.e("s_add_u32 s30, s30, 2048")
        A.e("s_add_u32 s28, s28, 64")
        A.e(f"s_add_u32 s29, s29, {32*pitch}")
        if not first:
            A.e("s_cmp_ge_u32 s31, s41")
            A.e(f"s_cselect_b32 s3, {K1_LDS}, 0")
            A.e("s_sub_u32 s31, s31, s3")

    PRO1 = int(os.environ.get("PRO1", "2"))
    for s in range(PRO1):
        dma(True)
    stamp(A, 1)
    A.e("v_lshrrev_b32 v13, 5, v0")
    nW = 0
    nP = 0
    if T <= 1:
        srd(A, 20, 48, 65536)
        A.e("s_and_b32 s39, s34, 3")
        if T == 1:
            A.e("s_sub_u32 s3, s40, 4")
            A.e("s_lshl_b32 s3, s3, 2")
            A.e("s_add_u32 s36, s3, s39")
        else:
            A.e("s_lshl_b32 s3, s40, 3")
            A.e("s_add_u32 s36, s3, s39")
        A.e("s_lshl_b32 s30, s36, 11")
        A.e("v_lshlrev_b32 v4, 4, v0")
        nP = 2 if T == 0 else 1
        A.e(f"s_mov_b32 s62, {f2u(LOG2E):#x}")
        A.e(f"s_mov_b32 s63, {f2u(LOG2E):#x}")
    k1_late_setup(A)
    if isB:
        A.e(f"s_mul_i32 s3, s34, {K1_WSLOT}")
        A.e("v_lshrrev_b32 v8, 4, v0")
        A.e("v_xor_b32 v8, v8, v12")
        A.e("v_lshlrev_b32 v8, 4, v8")
        A.e("v_lshl_add_u32 v8, v10, 6, v8")
        A.e("v_add_u32 v8, s3, v8")
        A.e("v_lshrrev_b32 v9, 4, v0")
        A.e(f"v_mul_u32_u24 v9, {2*K1_WSLOT}, v9")
        A.e("v_lshl_add_u32 v9, v12, 6, v9")
        A.e("v_lshl_add_u32 v9, v14, 3, v9")
        A.e("s_and_b32 s3, s40, 1")
        A.e("s_lshl_b32 s3, s3, 5")
        A.e("s_add_u32 s3, s3, 3072")
        A.e("v_add_u32 v9, s3, v9")
        for r in range(120, 124):
            A.e(f"v_mov_b32 v{r}, 0")
    S = [dict(X=[80, 84], W=[88, 92]), dict(X=[96, 100], W=[104, 108])]
    def rdX(t, rt):
        return f"ds_read_b128 {vr(S[t]['X'][rt],4)}, v{5+t} offset:{rt*2*K1_WSLOT}"
    def rdW(t, ct, h):
        return f"ds_read_b64_tr_b16 {vr(S[t]['W'][ct]+2*h,2)}, v7 offset:{t*4*K1_WSLOT + h*K1_WSLOT + ct*1024}"
    def mm(t, rt, ct):
        x, w = S[t]['X'][rt], S[t]['W'][ct]
        if NOMFMA: return
        if os.environ.get("M16"):
            mfma16(A, ACC(rt, ct) + 8*t, w, x); mfma16(A, ACC(rt, ct) + 8*t + 4, x, w); return
        if T == 1 and ct == 1: mfma32(A, ACC(rt, ct), x, w)
        else: mfma32(A, ACC(rt, ct), w, x)

    for s in range(PRO1, 5):
        dma(True)
    A.e(f"s_waitcnt vmcnt({4*D+nW})")
    A.e("s_barrier")
    stamp(A, 2)
    for q in (rdX(0, 0), rdW(0, 0, 0), rdW(0, 0, 1), rdW(0, 1, 0), rdW(0, 1, 1), rdX(0, 1)):
        A.e(q)
    L = f"K1_T{T}_loop"
    A.raw(".p2align 6")
    A.label(L)
    st = A.mark()
    A.e("s_waitcnt lgkmcnt(0)")
    mm(0, 0, 0); A.e(rdX(1, 0)); A.e(rdW(1, 0, 0))
    mm(0, 0, 1); A.e(rdW(1, 0, 1)); A.e(rdW(1, 1, 0))
    mm(0, 1, 0); A.e(rdW(1, 1, 1)); A.e(rdX(1, 1))
    if nW:
        A.e("s_sub_u32 s3, s32, 5")
        A.e("s_cmp_ge_u32 s3, 23")
    else:
        A.e("s_cmp_ge_u32 s32, 28")
    mm(0, 1, 1)
    if isB:
        A.e("ds_read_b128 v[112:115], v8")
        A.e("ds_read_b64_tr_b16 v[116:117], v9")
        A.e(f"ds_read_b64_tr_b16 v[118:119], v9 offset:{K1_WSLOT}")
    A.e(f"s_cbranch_scc1 {L}_tw")
    A.e(f"s_waitcnt vmcnt({3*D})")
    A.label(f"{L}_back")
    A.e("s_barrier")
    A.e("s_add_u32 s43, s43, 1")
    A.e(f"s_cmp_eq_u32 s43, {K1_NS}")
    A.e(f"s_cselect_b32 s33, s64, {K1_SLOT}")
    A.e("s_cselect_b32 s43, 0, s43")
    A.e(f"s_waitcnt lgkmcnt({3 if isB else 0})")
    mm(1, 0, 0)
    A.e("v_add_u32 v5, s33, v5")
    A.e("v_add_u32 v7, s33, v7")
    A.e(rdX(0, 0)); A.e(rdW(0, 0, 0))
    mm(1, 0, 1)
    A.e(rdW(0, 0, 1)); A.e(rdW(0, 1, 0)); A.e(rdW(0, 1, 1)); A.e(rdX(0, 1))
    A.e(f"s_cmp_ge_u32 s32, {0 if NODMA else 27}")
    mm(1, 1, 0)
    A.e("v_add_u32 v6, s33, v6")
    A.e(f"s_cbranch_scc1 {L}_{'pd' if nP else 'nodma'}")
    dma()
    A.label(f"{L}_nodma")
    if isB:
        A.e("s_waitcnt lgkmcnt(6)")
        if T == 2: mfma16(A, 120, 116, 112)
        else: mfma16(A, 120, 112, 116)
        A.e("v_add_u32 v8, s33, v8")
        A.e("v_add_u32 v9, s33, v9")
    A.e("s_add_u32 s32, s32, 1")
    A.e("s_cmp_lt_u32 s32, 32")
    mm(1, 1, 1)
    A.e(f"s_cbranch_scc1 {L}")
    A.check_loop(st, L)
    A.e(f"s_branch {L}_done")
    A.label(f"{L}_tw")
    A.e("s_cmp_eq_u32 s32, 28")
    A.e(f"s_cbranch_scc1 {L}_tw2")
    A.e("s_cmp_eq_u32 s32, 29")
    A.e(f"s_cbranch_scc1 {L}_tw1")
    if nP:
        A.e(f"s_waitcnt vmcnt({2*nP})")
        A.e("s_cmp_eq_u32 s32, 30")
        A.e(f"s_cbranch_scc1 {L}_back")
        A.fence()
        A.e("v_lshlrev_b32 v8, 8, v13")
        A.e("v_lshl_add_u32 v8, v12, 6, v8")
        A.e("v_lshl_add_u32 v8, v11, 5, v8")
        A.e("v_lshl_add_u32 v8, v14, 3, v8")
        A.e("v_add_u32 v8, s65, v8")
        A.e("s_waitcnt vmcnt(0)")
        for ct in range(nP):
            for t in range(2):
                for jh in range(2):
                    A.e(f"ds_read_b64_tr_b16 {vr(WPK+8*ct+4*t+2*jh,2)}, v8 offset:{ct*K1_SLOT + t*1024 + jh*512}")
        A.e("s_waitcnt lgkmcnt(0)")
    else:
        A.e("s_waitcnt vmcnt(0)")
    A.e(f"s_branch {L}_back")
    A.label(f"{L}_tw2")
    A.e(f"s_waitcnt vmcnt({2*D + (2 if nP else 0)})")
    A.e(f"s_branch {L}_back")
    A.label(f"{L}_tw1")
    A.e(f"s_waitcnt vmcnt({D + 2*nP})")
    A.e(f"s_branch {L}_back")
    if nP:
        A.label(f"{L}_pd")
        A.e(f"s_cmp_ge_u32 s32, {27 + nP}")
        A.e(f"s_cbranch_scc1 {L}_nodma")
        A.e("s_mov_b32 m0, s31")
        A.e("s_cmp_eq_u32 s32, 27")
        A.e("s_cselect_b32 s65, s31, s65")
        A.e(f"s_add_u32 s31, s31, {K1_SLOT}")
        A.e("buffer_load_dwordx4 v4, s[20:23], s30 offen lds")
        A.e("buffer_load_dwordx4 v4, s[20:23], s30 offen offset:1024 lds")
        A.e("s_add_u32 s30, s30, 8192")
        A.e(f"s_branch {L}_nodma")
    A.label(f"{L}_done")
    A.fence()
    stamp(A, 3)
    A.e("s_nop 15")
    A.e("s_waitcnt lgkmcnt(0)")
    if T == 1: k1_epi_kv(A)
    elif T == 0: k1_epi_eq(A)
    else: k1_epi_q(A, T)
    if DBG:
        stamp(A, 4)
        A.e("s_waitcnt vmcnt(0)")
        stamp(A, 5)
        dbg_dump(A, 6)

def pack16(A, base):
    for i in range(8):
        A.e(f"v_cvt_pk_bf16_f32 v{base+i}, v{base+2*i}, v{base+2*i+1}")

def k1_epi_q(A, T):
    isB = T >= 2
    if isB: A.e("s_sub_u32 s3, s40, 12")
    else: A.e("s_mov_b32 s3, s40")
    A.e("s_lshl_b32 s3, s3, 3")
    A.e("s_add_u32 s3, s3, s39")
    A.e("s_lshl_b32 s3, s3, 17")
    A.e("s_lshl_b32 s36, s35, 13")
    A.e("s_add_u32 s3, s3, s36")
    A.e("s_lshl_b32 s36, s38, 12")
    A.e("s_add_u32 s3, s3, s36")
    if isB: A.e(f"s_add_u32 s3, s3, {WS_QB}")
    A.e(f"s_add_u32 s36, s3, {4*131072}")
    A.e("v_lshlrev_b32 v1, 4, v0")
    for rt in range(2):
        for ct in range(2):
            b = ACC(rt, ct)
            pack16(A, b)
            for t in range(2):
                A.e(f"buffer_store_dwordx4 {vr(b+4*t,4)}, v1, s[24:27], s{36 if ct else 3} offen offset:{rt*2048+t*1024}")
    if isB:
        if T == 2:
            c = f2u(LOG2E / 32 ** 0.5)
            for r in range(120, 124):
                A.e(f"v_mul_f32 v{r}, {c:#x}, v{r}")
        A.e("v_cvt_pk_bf16_f32 v120, v120, v121")
        A.e("v_cvt_pk_bf16_f32 v121, v122, v123")
        A.e("v_bfe_u32 v2, v0, 4, 1")
        A.e("v_lshlrev_b32 v2, 9, v2")
        A.e("v_lshl_add_u32 v2, v10, 4, v2")
        A.e("v_lshrrev_b32 v3, 5, v0")
        A.e("v_lshl_add_u32 v2, v3, 3, v2")
        A.e("s_lshl_b32 s3, s35, 2")
        A.e("s_lshr_b32 s36, s34, 1")
        A.e("s_add_u32 s3, s3, s36")
        A.e("s_lshl_b32 s3, s3, 12")
        A.e(f"s_add_u32 s3, s3, {WS_KV + (2048 if T == 3 else 0)}")
        A.e("s_and_b32 s36, s40, 1")
        A.e("s_and_b32 s37, s34, 1")
        a, b_ = (36, 37) if T == 2 else (37, 36)
        A.e(f"s_lshl_b32 s{a}, s{a}, 10")
        A.e(f"s_lshl_b32 s{b_}, s{b_}, 8")
        A.e("s_add_u32 s3, s3, s36")
        A.e("s_add_u32 s3, s3, s37")
        A.e("buffer_store_dwordx2 v[120:121], v2, s[24:27], s3 offen")


def absmax_check(A, Ps, m, slow):
    regs = [p + i for p in Ps for i in range(16)]
    A.e(f"v_max3_f32 v{m}, |v{regs[0]}|, |v{regs[1]}|, |v{regs[2]}|")
    rest = regs[3:]
    while len(rest) >= 2:
        A.e(f"v_max3_f32 v{m}, v{m}, |v{rest[0]}|, |v{rest[1]}|")
        rest = rest[2:]
    if rest: A.e(f"v_max_f32 v{m}, v{m}, |v{rest[0]}|")
    A.e(f"v_cmp_nle_f32 vcc, v{m}, v{m+1}")
    A.e("s_nop 3")
    A.e("s_cmp_lg_u64 vcc, 0")
    A.e(f"s_cbranch_scc1 {slow}")

def true_shift(A, P, U, t0):
    mx, mn, x, y = t0, t0 + 2, t0 + 4, t0 + 5
    A.e(f"v_max3_f32 v{mx}, v{P}, v{P+1}, v{P+2}")
    A.e(f"v_min3_f32 v{mn}, v{P}, v{P+1}, v{P+2}")
    for i in range(3, 15, 2):
        A.e(f"v_max3_f32 v{mx}, v{mx}, v{P+i}, v{P+i+1}")
        A.e(f"v_min3_f32 v{mn}, v{mn}, v{P+i}, v{P+i+1}")
    A.e(f"v_max_f32 v{mx}, v{mx}, v{P+15}")
    A.e(f"v_min_f32 v{mn}, v{mn}, v{P+15}")
    A.e(f"v_mov_b32 v{x}, v{mx}")
    A.e(f"v_mov_b32 v{y}, v{mn}")
    A.e(f"v_permlane32_swap_b32 v{mx}, v{x}")
    A.e(f"v_permlane32_swap_b32 v{mn}, v{y}")
    A.e(f"v_max_f32 v{mx}, v{mx}, v{x}")
    A.e(f"v_min_f32 v{mn}, v{mn}, v{y}")
    for i in range(16):
        A.e(f"v_sub_f32 v{U+i}, v{P+i}, v{mn}")
        A.e(f"v_sub_f32 v{P+i}, v{P+i}, v{mx}")

def k1_epi_eq(A):
    units = [(rt, ct) for ct in range(2) for rt in range(2)]
    P = {u: 80 + 16 * i for i, u in enumerate(units)}
    U = 172
    A.e(f"v_mov_b32 v9, {f2u(SAFE):#x}")
    A.e("s_lshl_b32 s3, s36, 18")
    A.e("s_lshl_b32 s37, s35, 14")
    A.e("s_add_u32 s3, s3, s37")
    A.e("s_lshl_b32 s37, s38, 13")
    A.e("s_add_u32 s3, s3, s37")
    A.e(f"s_add_u32 s37, s3, {4 << 18}")
    A.e("v_lshlrev_b32 v1, 4, v0")
    A.e("v_add_u32 v2, 4096, v1")
    for u in units:
        rt, ct = u
        pack16(A, ACC(rt, ct))
        mfma32(A, P[u], WPK + 8 * ct, ACC(rt, ct), "0")
        mfma32(A, P[u], WPK + 8 * ct + 4, ACC(rt, ct) + 4)
    for u in units:
        for i in range(0, 16, 2):
            A.e(f"v_pk_mul_f32 {vr(P[u]+i,2)}, {vr(P[u]+i,2)}, s[62:63]")
    absmax_check(A, [P[u] for u in units], 8, "K1_eq_slow")
    def tail(u, src):
        rt, ct = u
        p = P[u]
        for half in range(2):
            for i in range(8 * half, 8 * half + 8):
                A.e(f"v_exp_f32 v{U+i}, -v{src+i}")
            for i in range(8 * half, 8 * half + 8):
                A.e(f"v_exp_f32 v{p+i}, v{p+i}")
            o = ACC(rt, ct) + 8 * half
            for i in range(4):
                A.e(f"v_cvt_pk_bf16_f32 v{o+4+i}, v{U+8*half+2*i}, v{U+8*half+2*i+1}")
            for i in range(4):
                A.e(f"v_cvt_pk_bf16_f32 v{o+i}, v{p+8*half+2*i}, v{p+8*half+2*i+1}")
            A.e(f"buffer_store_dwordx4 {vr(o+4,4)}, v{1+rt}, s[24:27], s{37 if ct else 3} offen offset:{2048 + half*1024}")
            A.e(f"buffer_store_dwordx4 {vr(o,4)}, v{1+rt}, s[24:27], s{37 if ct else 3} offen offset:{half*1024}")
    for u in units: tail(u, P[u])
    if DBG:
        stamp(A, 4)
        A.e("s_waitcnt vmcnt(0)")
        stamp(A, 5)
        dbg_dump(A, 6)
    A.e("s_endpgm")
    A.label("K1_eq_slow")
    A.fence()
    for u in units:
        true_shift(A, P[u], U, 2 + 8)
        tail_slow = tail
        tail(u, U)

PHI_BASE = 2 * K1_SLOT
PHI_PITCH = 136
PHI_WAVE = 64 * PHI_PITCH
XB_BASE = PHI_BASE + 8 * PHI_WAVE

def k1_epi_kv(A):
    Pr = [124, 140]
    Ur = [80, 96]
    KV = [156, 172]
    ZS = [112, 116]
    SEL = 120
    A.e(f"v_mov_b32 v9, {f2u(SAFE):#x}")
    for rt in range(2):
        pack16(A, ACC(rt, 0))
        mfma32(A, Pr[rt], WPK, ACC(rt, 0), "0")
        mfma32(A, Pr[rt], WPK + 4, ACC(rt, 0) + 4)
    for rt in range(2):
        pack16(A, ACC(rt, 1))
    A.e(f"s_mul_i32 s3, s34, {PHI_WAVE}")
    A.e(f"s_add_u32 s3, s3, {PHI_BASE}")
    A.e("v_and_b32 v1, 31, v0")
    A.e(f"v_mul_u32_u24 v1, {PHI_PITCH}, v1")
    A.e("v_lshl_add_u32 v1, v13, 3, v1")
    A.e("v_add_u32 v1, s3, v1")
    A.e("v_lshl_add_u32 v2, v13, 2, v12")
    A.e(f"v_mul_u32_u24 v2, {PHI_PITCH}, v2")
    A.e("v_bfe_u32 v3, v0, 4, 1")
    A.e("v_lshl_add_u32 v2, v3, 5, v2")
    A.e("v_lshl_add_u32 v2, v14, 3, v2")
    A.e("v_add_u32 v2, s3, v2")
    A.e("v_lshrrev_b32 v3, 2, v0")
    A.e("v_xor_b32 v3, v3, v0")
    A.e("v_and_b32 v3, 4, v3")
    A.e("v_or_b32 v3, v3, v14")
    A.e("v_cmp_eq_u32 vcc, 0, v3")
    A.e("v_mov_b32 v4, 0x3f803f80")
    A.e("v_mov_b32 v5, 0")
    for i in range(4):
        A.e(f"v_cndmask_b32 v{SEL+i}, v5, v4, vcc")
    for rt in range(2):
        for i in range(0, 16, 2):
            A.e(f"v_pk_mul_f32 {vr(Pr[rt]+i,2)}, {vr(Pr[rt]+i,2)}, s[62:63]")
    absmax_check(A, Pr, 8, "K1_kv_slow")
    def exps(rt, src):
        P, U = Pr[rt], Ur[rt]
        for i in range(16):
            A.e(f"v_exp_f32 v{U+i}, -v{src+i}")
            A.e(f"v_exp_f32 v{P+i}, v{P+i}")
    for rt in range(2): exps(rt, Pr[rt])
    A.label("K1_kv_common")
    A.e("s_nop 0")
    sp = [4, 10]; sn = [6, 14+2]
    sp = [4, 8]; sn = [6, 10]
    for rt in range(2):
        P, U = Pr[rt], Ur[rt]
        A.e(f"v_pk_add_f32 {vr(sp[rt],2)}, {vr(P,2)}, {vr(P+2,2)}")
        A.e(f"v_pk_add_f32 {vr(sn[rt],2)}, {vr(U,2)}, {vr(U+2,2)}")
        for i in range(4, 16, 2):
            A.e(f"v_pk_add_f32 {vr(sp[rt],2)}, {vr(sp[rt],2)}, {vr(P+i,2)}")
            A.e(f"v_pk_add_f32 {vr(sn[rt],2)}, {vr(sn[rt],2)}, {vr(U+i,2)}")
    for rt in range(2):
        A.e(f"v_add_f32 v{sp[rt]}, v{sp[rt]}, v{sp[rt]+1}")
        A.e(f"v_add_f32 v{sn[rt]}, v{sn[rt]}, v{sn[rt]+1}")
    for rt in range(2):
        A.e(f"v_permlane32_swap_b32 v{sp[rt]}, v{sn[rt]}")
    for rt in range(2):
        A.e(f"v_add_f32 v{sp[rt]}, v{sp[rt]}, v{sn[rt]}")
    for rt in range(2):
        A.e(f"v_rcp_f32 v{sp[rt]}, v{sp[rt]}")
    for rt in range(2):
        A.e(f"v_mov_b32 v{sn[rt]}, v{sp[rt]}")
    for rt in range(2):
        A.e(f"v_permlane32_swap_b32 v{sp[rt]}, v{sn[rt]}")
    for rt in range(2):
        P, U = Pr[rt], Ur[rt]
        for q in range(4):
            for i in (4 * q, 4 * q + 2):
                A.e(f"v_pk_mul_f32 {vr(P+i,2)}, {vr(P+i,2)}, {vr(sp[rt],2)} op_sel_hi:[1,0]")
                A.e(f"v_pk_mul_f32 {vr(U+i,2)}, {vr(U+i,2)}, {vr(sn[rt],2)} op_sel_hi:[1,0]")
            for i in (4 * q, 4 * q + 2):
                A.e(f"v_cvt_pk_bf16_f32 v{P+i//2}, v{P+i}, v{P+i+1}")
                A.e(f"v_cvt_pk_bf16_f32 v{U+i//2}, v{U+i}, v{U+i+1}")
            A.e(f"ds_write_b64 v1, {vr(P+2*q,2)} offset:{rt*32*PHI_PITCH + q*16}")
            A.e(f"ds_write_b64 v1, {vr(U+2*q,2)} offset:{rt*32*PHI_PITCH + 64 + q*16}")
    A.e("s_waitcnt lgkmcnt(0)")
    F = lambda ft, rt, t: 80 + ((ft * 2 + rt) * 2 + t) * 4
    for ft in range(2):
        for rt in range(2):
            for t in range(2):
                off = (rt * 32 + 16 * t) * PHI_PITCH + ft * 64
                A.e(f"ds_read_b64_tr_b16 {vr(F(ft,rt,t),2)}, v2 offset:{off}")
                A.e(f"ds_read_b64_tr_b16 {vr(F(ft,rt,t)+2,2)}, v2 offset:{off + 8*PHI_PITCH}")
    A.e("s_lshl_b32 s37, s36, 5")
    A.e("s_lshl_b32 s3, s35, 1")
    A.e("s_add_u32 s37, s37, s3")
    A.e("s_add_u32 s37, s37, s38")
    A.e("s_lshl_b32 s37, s37, 8")
    A.e(f"s_add_u32 s37, s37, {WS_ZP}")
    A.e("v_lshlrev_b32 v6, 2, v0")
    A.e("v_lshlrev_b32 v1, 4, v0")
    A.e("s_lshl_b32 s3, s39, 13")
    A.e(f"s_add_u32 s3, s3, {XB_BASE}")
    A.e("v_add_u32 v2, s3, v1")
    A.e("s_lshl_b32 s3, s36, 4")
    A.e("s_add_u32 s3, s3, s35")
    A.e("s_lshl_b32 s3, s3, 1")
    A.e("s_add_u32 s3, s3, s38")
    A.e("s_lshl_b32 s3, s3, 12")
    A.e(f"s_add_u32 s3, s3, {WS_KVP}")
    A.e("s_mov_b32 vcc_lo, 0")
    A.e("s_mov_b32 vcc_hi, -1")
    n = 0
    for ft in range(2):
        for rt in range(2):
            for t in range(2):
                n += 1
                A.e(f"s_waitcnt lgkmcnt({16 - 2*n})")
                first = "0" if (rt == 0 and t == 0) else None
                mfma32(A, KV[ft], F(ft, rt, t), ACC(rt, 1) + 4 * t, first)
                mfma16(A, ZS[ft], SEL, F(ft, rt, t), first)
    A.e(f"v_cndmask_b32 v4, v{ZS[0]}, v{ZS[1]}, vcc")
    A.e("buffer_store_dword v4, v6, s[24:27], s37 offen")
    A.e("s_cmp_eq_u32 s38, 0")
    A.e("s_nop 7")
    A.e("s_cbranch_scc0 K1_kv_wm1")
    hist = list(A.hist)
    for wm in range(2):
        if wm == 1:
            A.label("K1_kv_wm1")
            A.hist = list(hist)
        keep, send = KV[wm], KV[1 - wm]
        for rq in range(4):
            A.e(f"ds_write_b128 v2, {vr(send+4*rq,4)} offset:{(1-wm)*4096 + rq*1024}")
        A.e("s_waitcnt lgkmcnt(0)")
        A.e("s_barrier")
        for rq in range(4):
            A.e(f"ds_read_b128 {vr(80+4*rq,4)}, v2 offset:{wm*4096 + rq*1024}")
        for rq in range(4):
            A.e(f"s_waitcnt lgkmcnt({3-rq})")
            A.e(f"v_pk_add_f32 {vr(keep+4*rq,2)}, {vr(keep+4*rq,2)}, {vr(80+4*rq,2)}")
            A.e(f"v_pk_add_f32 {vr(keep+4*rq+2,2)}, {vr(keep+4*rq+2,2)}, {vr(80+4*rq+2,2)}")
            A.e(f"buffer_store_dwordx4 {vr(keep+4*rq,4)}, v1, s[24:27], s3 offen offset:{rq*1024}")
        if DBG:
            stamp(A, 4)
            A.e("s_waitcnt vmcnt(0)")
            stamp(A, 5)
            dbg_dump(A, 6)
        A.e("s_endpgm")
    A.label("K1_kv_slow")
    A.fence()
    for rt in range(2):
        true_shift(A, Pr[rt], Ur[rt], 4)
        exps(rt, Ur[rt])
    A.e("s_branch K1_kv_common")
```

```python
from asmlib import *
import struct

WS_EQ = 0; WS_QB = 8 << 20; WS_KV = 12 << 20; WS_KVP = 13 << 20; WS_ZP = 17 << 20
WS_OA = 18 << 20; WS_OB = 22 << 20; WS_BYTES = 26 << 20
SAFE = 60.0
LOG2E = 1.4426950408889634
def f2u(x): return struct.unpack("<I", struct.pack("<f", x))[0]

K1_WSLOT = 3328
K1_SLOT = 8 * K1_WSLOT
K1_NS = 6
K1_LDS = K1_SLOT * K1_NS
K1_VGPR = 192

import os
DBG = int(os.environ.get("K1DBG", "0"))
TL = int(os.environ.get("TL", "0"))
KIDX = [0]
NODMA = int(os.environ.get("NODMA", "0"))
NOMFMA = int(os.environ.get("NOMFMA", "0"))
NOLDS = int(os.environ.get("NOLDS", "0"))
def stamp(A, i):
    if DBG:
        A.e(f"s_memtime s[{70+2*i}:{71+2*i}]")
def dbg_dump(A, n):
    if not DBG: return
    if TL:
        k = KIDX[0]
        A.e("s_memrealtime s[86:87]")
        A.e("s_load_dwordx2 s[88:89], s[0:1], 80")
        A.e("s_waitcnt lgkmcnt(0)")
        srd(A, 92, 88, 256, 512 * (TL - 1 - k))
        L = A.newlabel("dbgskip")
        A.e("s_cmp_lg_u32 s34, 0")
        A.e(f"s_cbranch_scc1 {L}")
        A.e("s_and_b32 s3, s2, 127")
        A.e("s_cmp_lg_u32 s3, 77")
        A.e(f"s_cbranch_scc1 {L}")
        A.e("s_lshr_b32 s3, s2, 7")
        A.e("s_lshl_b32 s3, s3, 3")
        A.e("v_mov_b32 v1, 0")
        A.e("v_mov_b32 v2, s84")
        A.e("v_mov_b32 v3, s86")
        A.e("s_mov_b64 exec, 1")
        A.e(f"buffer_store_dwordx2 v[2:3], v1, s[92:95], s3 offen offset:{16*k} sc1")
        A.label(L)
        return
    L = A.newlabel("dbgskip")
    A.e("s_memrealtime s[86:87]")
    A.e("s_waitcnt lgkmcnt(0)")
    A.e("s_lshr_b32 s3, s2, 3")
    A.e(f"s_cmp_lg_u32 s3, {DBG-1}")
    A.e(f"s_cbranch_scc1 {L}")
    A.e("s_cmp_lg_u32 s34, 0")
    A.e(f"s_cbranch_scc1 {L}")
    A.e("s_load_dwordx2 s[88:89], s[0:1], 80")
    A.e("s_waitcnt lgkmcnt(0)")
    srd(A, 92, 88, 256)
    A.e("s_and_b32 s3, s2, 7")
    A.e("s_lshl_b32 s3, s3, 5")
    A.e("v_mov_b32 v1, 0")
    for i in range(1, n):
        A.e(f"s_sub_u32 s{70+2*i}, s{70+2*i}, s70")
        A.e(f"v_mov_b32 v2, s{70+2*i}")
        A.e(f"buffer_store_dword v2, v1, s[92:95], s3 offen offset:{4*i}")
    A.e("s_sub_u32 s86, s86, s84")
    A.e("v_mov_b32 v2, s86")
    A.e(f"buffer_store_dword v2, v1, s[92:95], s3 offen offset:28")
    A.label(L)

def gen_k1(A, name):
    KIDX[0] = 0
    kernel_header(A, name)
    Lend = "K1_end"
    A.e("s_cmp_ge_u32 s2, 256")
    A.e(f"s_cbranch_scc1 {Lend}")
    stamp(A, 0)
    if DBG: A.e("s_memrealtime s[84:85]")
    A.e("s_load_dwordx16 s[44:59], s[0:1], 0")
    A.e("s_load_dwordx2 s[60:61], s[0:1], 88")
    A.e("v_lshrrev_b32 v1, 6, v0")
    A.e("v_and_b32 v0, 63, v0")
    A.e("v_readfirstlane_b32 s34, v1")
    A.e("s_and_b32 s3, s2, 7")
    A.e("s_lshr_b32 s36, s2, 3")
    A.e("s_and_b32 s35, s3, 1")
    A.e("s_lshl_b32 s35, s35, 3")
    A.e("s_and_b32 s37, s36, 7")
    A.e("s_add_u32 s35, s35, s37")
    A.e("s_lshr_b32 s40, s3, 1")
    A.e("s_lshl_b32 s40, s40, 2")
    A.e("s_lshr_b32 s37, s36, 3")
    A.e("s_add_u32 s40, s40, s37")
    if int(os.environ.get("NTPERM", "1")):
        perm = [0, 1, 4, 5, 2, 6, 7, 8, 3, 9, 10, 11, 12, 13, 14, 15]
        tab = sum(p << (4 * i) for i, p in enumerate(perm))
        A.e(f"s_mov_b32 s36, {tab & 0xffffffff:#x}")
        A.e(f"s_mov_b32 s37, {tab >> 32:#x}")
        A.e("s_lshl_b32 s40, s40, 2")
        A.e("s_lshr_b64 s[36:37], s[36:37], s40")
        A.e("s_and_b32 s40, s36, 15")
    A.e("v_bfe_u32 v12, v0, 2, 2")
    A.e("v_and_b32 v14, 3, v0")
    A.e("v_lshrrev_b32 v2, 2, v0")
    A.e("s_lshl_b32 s3, s35, 7")
    A.e("s_lshl_b32 s37, s34, 4")
    A.e("s_add_u32 s3, s3, s37")
    A.e("v_add_u32 v2, s3, v2")
    A.e("v_lshlrev_b32 v2, 11, v2")
    A.e("v_bfe_u32 v15, v0, 4, 2")
    A.e("v_xor_b32 v15, v15, v14")
    A.e("v_lshl_add_u32 v2, v15, 4, v2")
    A.e("v_lshrrev_b32 v3, 4, v0")
    A.e("v_lshlrev_b32 v3, 6, v3")
    A.e("v_lshl_add_u32 v3, v14, 4, v3")
    A.e("s_lshl_b32 s3, s34, 2")
    A.e("v_add_u32 v1, s3, v12")
    A.e(f"s_mul_i32 s31, s34, {K1_WSLOT}")
    A.e(f"s_add_u32 s41, s31, {K1_LDS}")
    A.e("s_mov_b32 s28, 0")
    A.e("s_mov_b32 s29, 0")
    A.e("s_mov_b32 s30, 0")
    A.e("s_cmp_lt_u32 s40, 4")
    A.e("s_cbranch_scc1 K1_T0")
    A.e("s_cmp_lt_u32 s40, 12")
    A.e("s_cbranch_scc1 K1_T1")
    A.e("s_cmp_lt_u32 s40, 14")
    A.e("s_cbranch_scc1 K1_T2")
    A.e("s_branch K1_T3")
    hist = list(A.hist)
    for T in range(4):
        A.label(f"K1_T{T}")
        A.hist = list(hist)
        k1_type(A, T)
        A.e("s_endpgm")
    A.label(Lend)
    A.e("s_endpgm")

def k1_late_setup(A):
    A.e("s_lshr_b32 s38, s34, 2")
    A.e("s_and_b32 s39, s34, 3")
    A.e("v_and_b32 v10, 15, v0")
    A.e("v_lshlrev_b32 v5, 6, v10")
    A.e("v_bfe_u32 v11, v0, 4, 1")
    A.e(f"v_mul_u32_u24 v15, {K1_WSLOT}, v11")
    A.e("v_add_u32 v5, v5, v15")
    A.e(f"s_mul_i32 s3, s38, {4*K1_WSLOT}")
    A.e("v_add_u32 v5, s3, v5")
    A.e("v_xor_b32 v7, v13, v12")
    A.e("v_xor_b32 v15, 2, v7")
    A.e("v_lshl_add_u32 v6, v15, 4, v5")
    A.e("v_lshl_add_u32 v5, v7, 4, v5")
    A.e(f"v_mul_u32_u24 v7, {2*K1_WSLOT}, v13")
    A.e("v_lshl_add_u32 v7, v12, 6, v7")
    A.e("v_lshl_add_u32 v7, v11, 5, v7")
    A.e("v_lshl_add_u32 v7, v14, 3, v7")
    A.e("s_lshl_b32 s3, s39, 8")
    A.e("s_add_u32 s3, s3, 1024")
    A.e("v_add_u32 v7, s3, v7")
    A.e("s_mov_b32 s32, 0")
    A.e("s_mov_b32 s43, 0")
    A.e("s_mov_b32 s65, 0")
    A.e(f"s_mov_b32 s64, {(-5*K1_SLOT) & 0xffffffff}")
    for r in range(16, 80):
        A.e(f"v_mov_b32 v{r}, 0")
    srd(A, 24, 60, WS_BYTES)

ACC = lambda rt, ct: 16 + (rt * 2 + ct) * 16
WPK = 156

def k1_type(A, T):
    isB = T >= 2
    pitch = 2048 if isB else 6144
    wbytes = 1024 * pitch
    D = 4 if isB else 3
    xptr = 52 if isB else 44
    wptr = 54 if isB else 46
    if T == 0:
        A.e("s_lshl_b32 s42, s40, 9")
        A.e("s_add_u32 s37, s42, 256")
    elif T == 1:
        A.e("s_sub_u32 s3, s40, 4")
        A.e("s_lshl_b32 s3, s3, 8")
        A.e("s_add_u32 s42, s3, 2048")
        A.e("s_add_u32 s37, s3, 4096")
    else:
        A.e("s_sub_u32 s3, s40, 12")
        A.e("s_lshl_b32 s42, s3, 9")
        A.e("s_add_u32 s37, s42, 256")
    A.e(f"v_mul_u32_u24 v1, {pitch}, v1")
    A.e("v_add_u32 v3, v3, v1")
    if isB:
        A.e("s_lshl_b32 s3, s34, 8")
        A.e("v_lshl_add_u32 v4, v0, 2, s3")
    A.e("s_waitcnt lgkmcnt(0)")
    srd(A, 8, xptr, 2048 * 2048)
    for (d, cb, off) in ((12, 42, 1024), (16, 37, 2048)):
        A.e(f"s_add_u32 s{d}, s{wptr}, s{cb}")
        A.e(f"s_addc_u32 s{d+1}, s{wptr+1}, 0")
        A.e(f"s_sub_u32 s{d}, s{d}, {off}")
        A.e(f"s_subb_u32 s{d+1}, s{d+1}, 0")
        A.e(f"s_and_b32 s{d+1}, s{d+1}, 0xffff")
        A.e(f"s_sub_u32 s{d+2}, {wbytes + off}, s{cb}")
        A.e(f"s_mov_b32 s{d+3}, 0x00020000")
    if isB:
        srd(A, 20, 56 if T == 2 else 58, 65536 + 3072, -3072)

    def dma(first=False):
        A.e("s_mov_b32 m0, s31")
        A.e(f"s_add_u32 s31, s31, {K1_SLOT}")
        A.e("buffer_load_dwordx4 v2, s[8:11], s28 offen lds")
        A.e("buffer_load_dwordx4 v3, s[12:15], s29 offen offset:1024 lds")
        A.e("buffer_load_dwordx4 v3, s[16:19], s29 offen offset:2048 lds")
        if isB:
            A.e("buffer_load_dword v4, s[20:23], s30 offen offset:3072 lds")
            A.e("s_add_u32 s30, s30, 2048")
        A.e("s_add_u32 s28, s28, 64")
        A.e(f"s_add_u32 s29, s29, {32*pitch}")
        if not first:
            A.e("s_cmp_ge_u32 s31, s41")
            A.e(f"s_cselect_b32 s3, {K1_LDS}, 0")
            A.e("s_sub_u32 s31, s31, s3")

    PRO1 = int(os.environ.get("PRO1", "2"))
    for s in range(PRO1):
        dma(True)
    stamp(A, 1)
    A.e("v_lshrrev_b32 v13, 5, v0")
    nW = 0
    nP = 0
    if T <= 1:
        srd(A, 20, 48, 65536)
        A.e("s_and_b32 s39, s34, 3")
        if T == 1:
            A.e("s_sub_u32 s3, s40, 4")
            A.e("s_lshl_b32 s3, s3, 2")
            A.e("s_add_u32 s36, s3, s39")
        else:
            A.e("s_lshl_b32 s3, s40, 3")
            A.e("s_add_u32 s36, s3, s39")
        A.e("s_lshl_b32 s30, s36, 11")
        A.e("v_lshlrev_b32 v4, 4, v0")
        nP = 2 if T == 0 else 1
        A.e(f"s_mov_b32 s62, {f2u(LOG2E):#x}")
        A.e(f"s_mov_b32 s63, {f2u(LOG2E):#x}")
    k1_late_setup(A)
    if isB:
        A.e(f"s_mul_i32 s3, s34, {K1_WSLOT}")
        A.e("v_lshrrev_b32 v8, 4, v0")
        A.e("v_xor_b32 v8, v8, v12")
        A.e("v_lshlrev_b32 v8, 4, v8")
        A.e("v_lshl_add_u32 v8, v10, 6, v8")
        A.e("v_add_u32 v8, s3, v8")
        A.e("v_lshrrev_b32 v9, 4, v0")
        A.e(f"v_mul_u32_u24 v9, {2*K1_WSLOT}, v9")
        A.e("v_lshl_add_u32 v9, v12, 6, v9")
        A.e("v_lshl_add_u32 v9, v14, 3, v9")
        A.e("s_and_b32 s3, s40, 1")
        A.e("s_lshl_b32 s3, s3, 5")
        A.e("s_add_u32 s3, s3, 3072")
        A.e("v_add_u32 v9, s3, v9")
        for r in range(120, 124):
            A.e(f"v_mov_b32 v{r}, 0")
    S = [dict(X=[80, 84], W=[88, 92]), dict(X=[96, 100], W=[104, 108])]
    def rdX(t, rt):
        return f"ds_read_b128 {vr(S[t]['X'][rt],4)}, v{5+t} offset:{rt*2*K1_WSLOT}"
    def rdW(t, ct, h):
        return f"ds_read_b64_tr_b16 {vr(S[t]['W'][ct]+2*h,2)}, v7 offset:{t*4*K1_WSLOT + h*K1_WSLOT + ct*1024}"
    def mm(t, rt, ct):
        x, w = S[t]['X'][rt], S[t]['W'][ct]
        if NOMFMA: return
        if os.environ.get("M16"):
            mfma16(A, ACC(rt, ct) + 8*t, w, x); mfma16(A, ACC(rt, ct) + 8*t + 4, x, w); return
        if T == 1 and ct == 1: mfma32(A, ACC(rt, ct), x, w)
        else: mfma32(A, ACC(rt, ct), w, x)

    for s in range(PRO1, 5):
        dma(True)
    PF = int(os.environ.get("PF", "0"))
    npf = 0
    if PF:
        A.e("s_lshl_b32 s3, s34, 6")
        A.e("v_add_u32 v188, s3, v0")
        if PF & 1:
            A.e("s_lshr_b32 s3, s2, 6")
            A.e("s_and_b32 s3, s3, 3")
            A.e("s_lshl_b32 s3, s3, 5")
            A.e("s_lshl_b32 s66, s35, 7")
            A.e("s_add_u32 s3, s3, s66")
            A.e("s_lshl_b32 s3, s3, 11")
            A.e("v_lshlrev_b32 v189, 7, v188")
            A.e("buffer_load_dword v190, v189, s[8:11], s3 offen")
            npf += 1
        if PF & 2:
            A.e("s_and_b32 s3, s35, 7")
            A.e("s_lshl_b32 s3, s3, 7")
            A.e("v_and_b32 v189, 255, v188")
            A.e("v_lshrrev_b32 v187, 1, v189")
            A.e("v_add_u32 v187, s3, v187")
            A.e(f"v_mul_u32_u24 v187, {pitch}, v187")
            A.e("v_and_b32 v189, 1, v189")
            A.e("v_lshl_add_u32 v187, v189, 7, v187")
            Lp = A.newlabel("pf")
            A.e("s_cmp_ge_u32 s34, 4")
            A.e(f"s_cbranch_scc1 {Lp}_b")
            A.e("buffer_load_dword v191, v187, s[12:15], 0 offen offset:1024")
            A.e(f"s_branch {Lp}_c")
            A.label(f"{Lp}_b")
            A.e("buffer_load_dword v191, v187, s[16:19], 0 offen offset:2048")
            A.label(f"{Lp}_c")
            npf += 1
    A.e(f"s_waitcnt vmcnt({4*D+nW+npf})")
    A.e("s_barrier")
    stamp(A, 2)
    for q in (rdX(0, 0), rdW(0, 0, 0), rdW(0, 0, 1), rdW(0, 1, 0), rdW(0, 1, 1), rdX(0, 1)):
        A.e(q)
    L = f"K1_T{T}_loop"
    A.raw(".p2align 6")
    A.label(L)
    st = A.mark()
    A.e("s_waitcnt lgkmcnt(0)")
    mm(0, 0, 0); A.e(rdX(1, 0)); A.e(rdW(1, 0, 0))
    mm(0, 0, 1); A.e(rdW(1, 0, 1)); A.e(rdW(1, 1, 0))
    mm(0, 1, 0); A.e(rdW(1, 1, 1)); A.e(rdX(1, 1))
    if nW:
        A.e("s_sub_u32 s3, s32, 5")
        A.e("s_cmp_ge_u32 s3, 23")
    else:
        A.e("s_cmp_ge_u32 s32, 28")
    mm(0, 1, 1)
    if isB:
        A.e("ds_read_b128 v[112:115], v8")
        A.e("ds_read_b64_tr_b16 v[116:117], v9")
        A.e(f"ds_read_b64_tr_b16 v[118:119], v9 offset:{K1_WSLOT}")
    A.e(f"s_cbranch_scc1 {L}_tw")
    A.e(f"s_waitcnt vmcnt({3*D})")
    A.label(f"{L}_back")
    A.e("s_barrier")
    A.e("s_add_u32 s43, s43, 1")
    A.e(f"s_cmp_eq_u32 s43, {K1_NS}")
    A.e(f"s_cselect_b32 s33, s64, {K1_SLOT}")
    A.e("s_cselect_b32 s43, 0, s43")
    A.e(f"s_waitcnt lgkmcnt({3 if isB else 0})")
    mm(1, 0, 0)
    A.e("v_add_u32 v5, s33, v5")
    A.e("v_add_u32 v7, s33, v7")
    A.e(rdX(0, 0)); A.e(rdW(0, 0, 0))
    mm(1, 0, 1)
    A.e(rdW(0, 0, 1)); A.e(rdW(0, 1, 0)); A.e(rdW(0, 1, 1)); A.e(rdX(0, 1))
    A.e(f"s_cmp_ge_u32 s32, {0 if NODMA else 27}")
    mm(1, 1, 0)
    A.e("v_add_u32 v6, s33, v6")
    A.e(f"s_cbranch_scc1 {L}_{'pd' if nP else 'nodma'}")
    dma()
    A.label(f"{L}_nodma")
    if isB:
        A.e("s_waitcnt lgkmcnt(6)")
        if T == 2: mfma16(A, 120, 116, 112)
        else: mfma16(A, 120, 112, 116)
        A.e("v_add_u32 v8, s33, v8")
        A.e("v_add_u32 v9, s33, v9")
    A.e("s_add_u32 s32, s32, 1")
    A.e("s_cmp_lt_u32 s32, 32")
    mm(1, 1, 1)
    A.e(f"s_cbranch_scc1 {L}")
    A.check_loop(st, L)
    A.e(f"s_branch {L}_done")
    A.label(f"{L}_tw")
    A.e("s_cmp_eq_u32 s32, 28")
    A.e(f"s_cbranch_scc1 {L}_tw2")
    A.e("s_cmp_eq_u32 s32, 29")
    A.e(f"s_cbranch_scc1 {L}_tw1")
    if nP:
        A.e(f"s_waitcnt vmcnt({2*nP})")
        A.e("s_cmp_eq_u32 s32, 30")
        A.e(f"s_cbranch_scc1 {L}_back")
        A.fence()
        A.e("v_lshlrev_b32 v8, 8, v13")
        A.e("v_lshl_add_u32 v8, v12, 6, v8")
        A.e("v_lshl_add_u32 v8, v11, 5, v8")
        A.e("v_lshl_add_u32 v8, v14, 3, v8")
        A.e("v_add_u32 v8, s65, v8")
        A.e("s_waitcnt vmcnt(0)")
        for ct in range(nP):
            for t in range(2):
                for jh in range(2):
                    A.e(f"ds_read_b64_tr_b16 {vr(WPK+8*ct+4*t+2*jh,2)}, v8 offset:{ct*K1_SLOT + t*1024 + jh*512}")
        A.e("s_waitcnt lgkmcnt(0)")
    else:
        A.e("s_waitcnt vmcnt(0)")
    A.e(f"s_branch {L}_back")
    A.label(f"{L}_tw2")
    A.e(f"s_waitcnt vmcnt({2*D + (2 if nP else 0)})")
    A.e(f"s_branch {L}_back")
    A.label(f"{L}_tw1")
    A.e(f"s_waitcnt vmcnt({D + 2*nP})")
    A.e(f"s_branch {L}_back")
    if nP:
        A.label(f"{L}_pd")
        A.e(f"s_cmp_ge_u32 s32, {27 + nP}")
        A.e(f"s_cbranch_scc1 {L}_nodma")
        A.e("s_mov_b32 m0, s31")
        A.e("s_cmp_eq_u32 s32, 27")
        A.e("s_cselect_b32 s65, s31, s65")
        A.e(f"s_add_u32 s31, s31, {K1_SLOT}")
        A.e("buffer_load_dwordx4 v4, s[20:23], s30 offen lds")
        A.e("buffer_load_dwordx4 v4, s[20:23], s30 offen offset:1024 lds")
        A.e("s_add_u32 s30, s30, 8192")
        A.e(f"s_branch {L}_nodma")
    A.label(f"{L}_done")
    A.fence()
    stamp(A, 3)
    A.e("s_nop 15")
    A.e("s_waitcnt lgkmcnt(0)")
    if T == 1: k1_epi_kv(A)
    elif T == 0: k1_epi_eq(A)
    else: k1_epi_q(A, T)
    if DBG:
        stamp(A, 4)
        A.e("s_waitcnt vmcnt(0)")
        stamp(A, 5)
        dbg_dump(A, 6)

def pack16(A, base):
    for i in range(8):
        A.e(f"v_cvt_pk_bf16_f32 v{base+i}, v{base+2*i}, v{base+2*i+1}")

def k1_epi_q(A, T):
    isB = T >= 2
    if isB: A.e("s_sub_u32 s3, s40, 12")
    else: A.e("s_mov_b32 s3, s40")
    A.e("s_lshl_b32 s3, s3, 3")
    A.e("s_add_u32 s3, s3, s39")
    A.e("s_lshl_b32 s3, s3, 17")
    A.e("s_lshl_b32 s36, s35, 13")
    A.e("s_add_u32 s3, s3, s36")
    A.e("s_lshl_b32 s36, s38, 12")
    A.e("s_add_u32 s3, s3, s36")
    if isB: A.e(f"s_add_u32 s3, s3, {WS_QB}")
    A.e(f"s_add_u32 s36, s3, {4*131072}")
    A.e("v_lshlrev_b32 v1, 4, v0")
    for rt in range(2):
        for ct in range(2):
            b = ACC(rt, ct)
            pack16(A, b)
            for t in range(2):
                A.e(f"buffer_store_dwordx4 {vr(b+4*t,4)}, v1, s[24:27], s{36 if ct else 3} offen offset:{rt*2048+t*1024}")
    if isB:
        if T == 2:
            c = f2u(LOG2E / 32 ** 0.5)
            for r in range(120, 124):
                A.e(f"v_mul_f32 v{r}, {c:#x}, v{r}")
        A.e("v_cvt_pk_bf16_f32 v120, v120, v121")
        A.e("v_cvt_pk_bf16_f32 v121, v122, v123")
        A.e("v_bfe_u32 v2, v0, 4, 1")
        A.e("v_lshlrev_b32 v2, 9, v2")
        A.e("v_lshl_add_u32 v2, v10, 4, v2")
        A.e("v_lshrrev_b32 v3, 5, v0")
        A.e("v_lshl_add_u32 v2, v3, 3, v2")
        A.e("s_lshl_b32 s3, s35, 2")
        A.e("s_lshr_b32 s36, s34, 1")
        A.e("s_add_u32 s3, s3, s36")
        A.e("s_lshl_b32 s3, s3, 12")
        A.e(f"s_add_u32 s3, s3, {WS_KV + (2048 if T == 3 else 0)}")
        A.e("s_and_b32 s36, s40, 1")
        A.e("s_and_b32 s37, s34, 1")
        a, b_ = (36, 37) if T == 2 else (37, 36)
        A.e(f"s_lshl_b32 s{a}, s{a}, 10")
        A.e(f"s_lshl_b32 s{b_}, s{b_}, 8")
        A.e("s_add_u32 s3, s3, s36")
        A.e("s_add_u32 s3, s3, s37")
        A.e("buffer_store_dwordx2 v[120:121], v2, s[24:27], s3 offen")


def absmax_check(A, Ps, m, slow):
    regs = [p + i for p in Ps for i in range(16)]
    A.e(f"v_max3_f32 v{m}, |v{regs[0]}|, |v{regs[1]}|, |v{regs[2]}|")
    rest = regs[3:]
    while len(rest) >= 2:
        A.e(f"v_max3_f32 v{m}, v{m}, |v{rest[0]}|, |v{rest[1]}|")
        rest = rest[2:]
    if rest: A.e(f"v_max_f32 v{m}, v{m}, |v{rest[0]}|")
    A.e(f"v_cmp_nle_f32 vcc, v{m}, v{m+1}")
    A.e("s_nop 3")
    A.e("s_cmp_lg_u64 vcc, 0")
    A.e(f"s_cbranch_scc1 {slow}")

def true_shift(A, P, U, t0):
    mx, mn, x, y = t0, t0 + 2, t0 + 4, t0 + 5
    A.e(f"v_max3_f32 v{mx}, v{P}, v{P+1}, v{P+2}")
    A.e(f"v_min3_f32 v{mn}, v{P}, v{P+1}, v{P+2}")
    for i in range(3, 15, 2):
        A.e(f"v_max3_f32 v{mx}, v{mx}, v{P+i}, v{P+i+1}")
        A.e(f"v_min3_f32 v{mn}, v{mn}, v{P+i}, v{P+i+1}")
    A.e(f"v_max_f32 v{mx}, v{mx}, v{P+15}")
    A.e(f"v_min_f32 v{mn}, v{mn}, v{P+15}")
    A.e(f"v_mov_b32 v{x}, v{mx}")
    A.e(f"v_mov_b32 v{y}, v{mn}")
    A.e(f"v_permlane32_swap_b32 v{mx}, v{x}")
    A.e(f"v_permlane32_swap_b32 v{mn}, v{y}")
    A.e(f"v_max_f32 v{mx}, v{mx}, v{x}")
    A.e(f"v_min_f32 v{mn}, v{mn}, v{y}")
    for i in range(16):
        A.e(f"v_sub_f32 v{U+i}, v{P+i}, v{mn}")
        A.e(f"v_sub_f32 v{P+i}, v{P+i}, v{mx}")

def k1_epi_eq(A):
    units = [(rt, ct) for ct in range(2) for rt in range(2)]
    P = {u: 80 + 16 * i for i, u in enumerate(units)}
    U = 172
    A.e(f"v_mov_b32 v9, {f2u(SAFE):#x}")
    A.e("s_lshl_b32 s3, s36, 18")
    A.e("s_lshl_b32 s37, s35, 14")
    A.e("s_add_u32 s3, s3, s37")
    A.e("s_lshl_b32 s37, s38, 13")
    A.e("s_add_u32 s3, s3, s37")
    A.e(f"s_add_u32 s37, s3, {4 << 18}")
    A.e("v_lshlrev_b32 v1, 4, v0")
    A.e("v_add_u32 v2, 4096, v1")
    for u in units:
        rt, ct = u
        pack16(A, ACC(rt, ct))
        mfma32(A, P[u], WPK + 8 * ct, ACC(rt, ct), "0")
        mfma32(A, P[u], WPK + 8 * ct + 4, ACC(rt, ct) + 4)
    for u in units:
        for i in range(0, 16, 2):
            A.e(f"v_pk_mul_f32 {vr(P[u]+i,2)}, {vr(P[u]+i,2)}, s[62:63]")
    absmax_check(A, [P[u] for u in units], 8, "K1_eq_slow")
    def tail(u, src):
        rt, ct = u
        p = P[u]
        for half in range(2):
            for i in range(8 * half, 8 * half + 8):
                A.e(f"v_exp_f32 v{U+i}, -v{src+i}")
            for i in range(8 * half, 8 * half + 8):
                A.e(f"v_exp_f32 v{p+i}, v{p+i}")
            o = ACC(rt, ct) + 8 * half
            for i in range(4):
                A.e(f"v_cvt_pk_bf16_f32 v{o+4+i}, v{U+8*half+2*i}, v{U+8*half+2*i+1}")
            for i in range(4):
                A.e(f"v_cvt_pk_bf16_f32 v{o+i}, v{p+8*half+2*i}, v{p+8*half+2*i+1}")
            A.e(f"buffer_store_dwordx4 {vr(o+4,4)}, v{1+rt}, s[24:27], s{37 if ct else 3} offen offset:{2048 + half*1024}")
            A.e(f"buffer_store_dwordx4 {vr(o,4)}, v{1+rt}, s[24:27], s{37 if ct else 3} offen offset:{half*1024}")
    for u in units: tail(u, P[u])
    if DBG:
        stamp(A, 4)
        A.e("s_waitcnt vmcnt(0)")
        stamp(A, 5)
        dbg_dump(A, 6)
    A.e("s_endpgm")
    A.label("K1_eq_slow")
    A.fence()
    for u in units:
        true_shift(A, P[u], U, 2 + 8)
        tail_slow = tail
        tail(u, U)

PHI_BASE = 2 * K1_SLOT
PHI_PITCH = 136
PHI_WAVE = 64 * PHI_PITCH
XB_BASE = PHI_BASE + 8 * PHI_WAVE

def k1_epi_kv(A):
    Pr = [124, 140]
    Ur = [80, 96]
    KV = [156, 172]
    ZS = [112, 116]
    SEL = 120
    A.e(f"v_mov_b32 v9, {f2u(SAFE):#x}")
    for rt in range(2):
        pack16(A, ACC(rt, 0))
        mfma32(A, Pr[rt], WPK, ACC(rt, 0), "0")
        mfma32(A, Pr[rt], WPK + 4, ACC(rt, 0) + 4)
    for rt in range(2):
        pack16(A, ACC(rt, 1))
    A.e(f"s_mul_i32 s3, s34, {PHI_WAVE}")
    A.e(f"s_add_u32 s3, s3, {PHI_BASE}")
    A.e("v_and_b32 v1, 31, v0")
    A.e(f"v_mul_u32_u24 v1, {PHI_PITCH}, v1")
    A.e("v_lshl_add_u32 v1, v13, 3, v1")
    A.e("v_add_u32 v1, s3, v1")
    A.e("v_lshl_add_u32 v2, v13, 2, v12")
    A.e(f"v_mul_u32_u24 v2, {PHI_PITCH}, v2")
    A.e("v_bfe_u32 v3, v0, 4, 1")
    A.e("v_lshl_add_u32 v2, v3, 5, v2")
    A.e("v_lshl_add_u32 v2, v14, 3, v2")
    A.e("v_add_u32 v2, s3, v2")
    A.e("v_lshrrev_b32 v3, 2, v0")
    A.e("v_xor_b32 v3, v3, v0")
    A.e("v_and_b32 v3, 4, v3")
    A.e("v_or_b32 v3, v3, v14")
    A.e("v_cmp_eq_u32 vcc, 0, v3")
    A.e("v_mov_b32 v4, 0x3f803f80")
    A.e("v_mov_b32 v5, 0")
    for i in range(4):
        A.e(f"v_cndmask_b32 v{SEL+i}, v5, v4, vcc")
    for rt in range(2):
        for i in range(0, 16, 2):
            A.e(f"v_pk_mul_f32 {vr(Pr[rt]+i,2)}, {vr(Pr[rt]+i,2)}, s[62:63]")
    absmax_check(A, Pr, 8, "K1_kv_slow")
    def exps(rt, src):
        P, U = Pr[rt], Ur[rt]
        for i in range(16):
            A.e(f"v_exp_f32 v{U+i}, -v{src+i}")
            A.e(f"v_exp_f32 v{P+i}, v{P+i}")
    for rt in range(2): exps(rt, Pr[rt])
    A.label("K1_kv_common")
    A.e("s_nop 0")
    sp = [4, 10]; sn = [6, 14+2]
    sp = [4, 8]; sn = [6, 10]
    for rt in range(2):
        P, U = Pr[rt], Ur[rt]
        A.e(f"v_pk_add_f32 {vr(sp[rt],2)}, {vr(P,2)}, {vr(P+2,2)}")
        A.e(f"v_pk_add_f32 {vr(sn[rt],2)}, {vr(U,2)}, {vr(U+2,2)}")
        for i in range(4, 16, 2):
            A.e(f"v_pk_add_f32 {vr(sp[rt],2)}, {vr(sp[rt],2)}, {vr(P+i,2)}")
            A.e(f"v_pk_add_f32 {vr(sn[rt],2)}, {vr(sn[rt],2)}, {vr(U+i,2)}")
    for rt in range(2):
        A.e(f"v_add_f32 v{sp[rt]}, v{sp[rt]}, v{sp[rt]+1}")
        A.e(f"v_add_f32 v{sn[rt]}, v{sn[rt]}, v{sn[rt]+1}")
    for rt in range(2):
        A.e(f"v_permlane32_swap_b32 v{sp[rt]}, v{sn[rt]}")
    for rt in range(2):
        A.e(f"v_add_f32 v{sp[rt]}, v{sp[rt]}, v{sn[rt]}")
    for rt in range(2):
        A.e(f"v_rcp_f32 v{sp[rt]}, v{sp[rt]}")
    for rt in range(2):
        A.e(f"v_mov_b32 v{sn[rt]}, v{sp[rt]}")
    for rt in range(2):
        A.e(f"v_permlane32_swap_b32 v{sp[rt]}, v{sn[rt]}")
    for rt in range(2):
        P, U = Pr[rt], Ur[rt]
        for q in range(4):
            for i in (4 * q, 4 * q + 2):
                A.e(f"v_pk_mul_f32 {vr(P+i,2)}, {vr(P+i,2)}, {vr(sp[rt],2)} op_sel_hi:[1,0]")
                A.e(f"v_pk_mul_f32 {vr(U+i,2)}, {vr(U+i,2)}, {vr(sn[rt],2)} op_sel_hi:[1,0]")
            for i in (4 * q, 4 * q + 2):
                A.e(f"v_cvt_pk_bf16_f32 v{P+i//2}, v{P+i}, v{P+i+1}")
                A.e(f"v_cvt_pk_bf16_f32 v{U+i//2}, v{U+i}, v{U+i+1}")
            A.e(f"ds_write_b64 v1, {vr(P+2*q,2)} offset:{rt*32*PHI_PITCH + q*16}")
            A.e(f"ds_write_b64 v1, {vr(U+2*q,2)} offset:{rt*32*PHI_PITCH + 64 + q*16}")
    A.e("s_waitcnt lgkmcnt(0)")
    F = lambda ft, rt, t: 80 + ((ft * 2 + rt) * 2 + t) * 4
    for ft in range(2):
        for rt in range(2):
            for t in range(2):
                off = (rt * 32 + 16 * t) * PHI_PITCH + ft * 64
                A.e(f"ds_read_b64_tr_b16 {vr(F(ft,rt,t),2)}, v2 offset:{off}")
                A.e(f"ds_read_b64_tr_b16 {vr(F(ft,rt,t)+2,2)}, v2 offset:{off + 8*PHI_PITCH}")
    A.e("s_lshl_b32 s37, s36, 5")
    A.e("s_lshl_b32 s3, s35, 1")
    A.e("s_add_u32 s37, s37, s3")
    A.e("s_add_u32 s37, s37, s38")
    A.e("s_lshl_b32 s37, s37, 8")
    A.e(f"s_add_u32 s37, s37, {WS_ZP}")
    A.e("v_lshlrev_b32 v6, 2, v0")
    A.e("v_lshlrev_b32 v1, 4, v0")
    A.e("s_lshl_b32 s3, s39, 13")
    A.e(f"s_add_u32 s3, s3, {XB_BASE}")
    A.e("v_add_u32 v2, s3, v1")
    A.e("s_lshl_b32 s3, s36, 4")
    A.e("s_add_u32 s3, s3, s35")
    A.e("s_lshl_b32 s3, s3, 1")
    A.e("s_add_u32 s3, s3, s38")
    A.e("s_lshl_b32 s3, s3, 12")
    A.e(f"s_add_u32 s3, s3, {WS_KVP}")
    A.e("s_mov_b32 vcc_lo, 0")
    A.e("s_mov_b32 vcc_hi, -1")
    n = 0
    for ft in range(2):
        for rt in range(2):
            for t in range(2):
                n += 1
                A.e(f"s_waitcnt lgkmcnt({16 - 2*n})")
                first = "0" if (rt == 0 and t == 0) else None
                mfma32(A, KV[ft], F(ft, rt, t), ACC(rt, 1) + 4 * t, first)
                mfma16(A, ZS[ft], SEL, F(ft, rt, t), first)
    A.e(f"v_cndmask_b32 v4, v{ZS[0]}, v{ZS[1]}, vcc")
    A.e("buffer_store_dword v4, v6, s[24:27], s37 offen")
    A.e("s_cmp_eq_u32 s38, 0")
    A.e("s_nop 7")
    A.e("s_cbranch_scc0 K1_kv_wm1")
    hist = list(A.hist)
    for wm in range(2):
        if wm == 1:
            A.label("K1_kv_wm1")
            A.hist = list(hist)
        keep, send = KV[wm], KV[1 - wm]
        for rq in range(4):
            A.e(f"ds_write_b128 v2, {vr(send+4*rq,4)} offset:{(1-wm)*4096 + rq*1024}")
        A.e("s_waitcnt lgkmcnt(0)")
        A.e("s_barrier")
        for rq in range(4):
            A.e(f"ds_read_b128 {vr(80+4*rq,4)}, v2 offset:{wm*4096 + rq*1024}")
        for rq in range(4):
            A.e(f"s_waitcnt lgkmcnt({3-rq})")
            A.e(f"v_pk_add_f32 {vr(keep+4*rq,2)}, {vr(keep+4*rq,2)}, {vr(80+4*rq,2)}")
            A.e(f"v_pk_add_f32 {vr(keep+4*rq+2,2)}, {vr(keep+4*rq+2,2)}, {vr(80+4*rq+2,2)}")
            A.e(f"buffer_store_dwordx4 {vr(keep+4*rq,4)}, v1, s[24:27], s3 offen offset:{rq*1024}")
        if DBG:
            stamp(A, 4)
            A.e("s_waitcnt vmcnt(0)")
            stamp(A, 5)
            dbg_dump(A, 6)
        A.e("s_endpgm")
    A.label("K1_kv_slow")
    A.fence()
    for rt in range(2):
        true_shift(A, Pr[rt], Ur[rt], 4)
        exps(rt, Ur[rt])
    A.e("s_branch K1_kv_common")
```
